```python
import torch

def _softmax(x, axis=-1):
    return torch.softmax(x, dim=axis)

def _gelu(x):
    return torch.nn.functional.gelu(x, approximate='tanh')

def _silu(x):
    return torch.nn.functional.silu(x)

def _sigmoid(x):
    return torch.sigmoid(x)

def _layernorm(x, axis=-1, eps=1e-05):
    m = x.mean(dim=axis, keepdim=True)
    v = x.var(dim=axis, keepdim=True, unbiased=False)
    return (x - m) / torch.sqrt(v + eps)

def _scatter_add(tgt, idx, src, axis=0):
    return tgt.clone().index_add_(axis, idx, src)

def _segment_sum(src, seg, n):
    out = torch.zeros((n,) + src.shape[1:], dtype=src.dtype)
    return out.index_add_(0, seg, src)

def _pad(x, pw):
    flat = tuple((v for pair in reversed(pw) for v in pair))
    return torch.nn.functional.pad(x, flat)
kernel_name = 'sequential_preLN__memory_aug_recurrent_mem_tr__glu_gated_bilinear__prompt'

def setup_inputs():

    _w = lambda a: (lambda t: t.to(torch.bfloat16) if t.is_floating_point() else t)(torch.as_tensor(a))

    def _A_setup():
        B, S, Dm = (1, 2048, 512)
        H, Dh = (32, 128)
        M, seg = (8, 32)
        seg = min(seg, S)
        S = S // seg * seg
        return {'x': _w((lambda *s: torch.randn(*s, dtype=torch.bfloat16) * 0.05)(B, S, Dm)), 'mem0': _w((lambda *s: torch.randn(*s, dtype=torch.bfloat16) * 0.2)(B, M, Dm)), 'Wq': _w((lambda *s: torch.randn(*s, dtype=torch.bfloat16) * 1.6)(Dm, H, Dh) * Dm ** (-0.5)), 'Wk': _w((lambda *s: torch.randn(*s, dtype=torch.bfloat16) * 1.6)(Dm, H, Dh) * Dm ** (-0.5)), 'Wv': _w((lambda *s: torch.randn(*s, dtype=torch.bfloat16) * 0.2)(Dm, H, Dh) * Dm ** (-0.5)), 'Wo': _w((lambda *s: torch.randn(*s, dtype=torch.bfloat16) * 0.2)(H, Dh, Dm) * (H * Dh) ** (-0.5)), 'seg_len': seg}
    _A_in = _A_setup()

    def _B_setup():
        B, S, D, F = (1, 2048, 512, 1376)
        return {'x': _w((lambda *s: torch.randn(*s, dtype=torch.bfloat16) * 0.05)(B, S, D)), 'w_gate': _w((lambda *s: torch.randn(*s, dtype=torch.bfloat16) * 0.2)(D, F) * D ** (-0.5)), 'w_up': _w((lambda *s: torch.randn(*s, dtype=torch.bfloat16) * 0.2)(D, F) * D ** (-0.5)), 'w_down': _w((lambda *s: torch.randn(*s, dtype=torch.bfloat16) * 0.2)(F, D) * F ** (-0.5))}
    _B_in = _B_setup()
    return {'A_x': _A_in['x'], 'A_mem0': _A_in['mem0'], 'A_Wq': _A_in['Wq'], 'A_Wk': _A_in['Wk'], 'A_Wv': _A_in['Wv'], 'A_Wo': _A_in['Wo'], 'A_seg_len': _A_in['seg_len'], 'B_x': _B_in['x'], 'B_w_gate': _B_in['w_gate'], 'B_w_up': _B_in['w_up'], 'B_w_down': _B_in['w_down']}

def reference(A_x, A_mem0, A_Wq, A_Wk, A_Wv, A_Wo, A_seg_len, B_x, B_w_gate, B_w_up, B_w_down):

    def _A_ref(x, mem0, Wq, Wk, Wv, Wo, seg_len):
        B, S, Dm = x.shape
        H, Dh = (Wq.shape[1], Wq.shape[2])
        M = mem0.shape[1]
        scale = Dh ** (-0.5)
        n_seg = S // seg_len
        L = M + seg_len
        idx = torch.arange(L)
        mask = (idx[:, None] < M) | (idx[:, None] >= idx[None, :])
        mem = mem0
        outs = []
        for s in range(n_seg):
            xs = x[:, s * seg_len:(s + 1) * seg_len, :].clone()
            h = torch.concatenate([mem, xs], axis=1)
            q = torch.einsum('btd,dhe->bhte', h, Wq)
            k = torch.einsum('btd,dhe->bhte', h, Wk)
            v = torch.einsum('btd,dhe->bhte', h, Wv)
            scores = torch.einsum('bhqe,bhke->bhqk', q, k) * scale
            scores = torch.where(mask[None, None], scores, -1000000000.0)
            p = _softmax(scores, axis=-1)
            o = torch.einsum('bhqk,bhke->bhqe', p, v)
            o = torch.einsum('bhte,hed->btd', o, Wo)
            mem = o[:, :M, :].clone()
            outs.append(o[:, M:, :])
        return torch.concatenate(outs, axis=1)

    def _B_ref(x, w_gate, w_up, w_down):
        g = torch.einsum('bsd,df->bsf', x, w_gate)
        u = torch.einsum('bsd,df->bsf', x, w_up)
        h = g * u
        return torch.einsum('bsf,fd->bsd', h, w_down)
    x = A_x
    h = x + _A_ref(_layernorm(x, axis=-1), A_mem0, A_Wq, A_Wk, A_Wv, A_Wo, A_seg_len)
    h2 = h + _B_ref(_layernorm(h, axis=-1), B_w_gate, B_w_up, B_w_down)
    return h2
```

```python
import re

def v(b, n=1): return f"v{b}" if n == 1 else f"v[{b}:{b+n-1}]"
def a(b, n=1): return f"a{b}" if n == 1 else f"a[{b}:{b+n-1}]"
def s(b, n=1): return f"s{b}" if n == 1 else f"s[{b}:{b+n-1}]"

class Asm:
    def __init__(self):
        self.lines = []
    def __call__(self, txt):
        for t in txt.split('\n'):
            t = t.strip()
            if t: self.lines.append('    ' + t)
    def label(self, name): self.lines.append(name + ':')
    def comment(self, txt): self.lines.append('    ; ' + txt)
    def raw(self, txt): self.lines.append(txt)
    def text(self): return '\n'.join(self.lines) + '\n'
    def nop(self, n):
        while n > 0:
            k = min(n, 16); self.lines.append(f'    s_nop {k-1}'); n -= k

_reg_re = re.compile(r'\b([vas])(\d+)\b|\b([vas])\[(\d+):(\d+)\]')
def regs_of(op):
    out = []
    for m in _reg_re.finditer(op):
        if m.group(1): out.append((m.group(1), int(m.group(2))))
        else: out += [(m.group(3), i) for i in range(int(m.group(4)), int(m.group(5)) + 1)]
    if 'vcc' in op: out.append(('s', 'vcc'))
    if re.search(r'\bexec\b', op): out.append(('s', 'exec'))
    return out

TRANS = ('v_exp_', 'v_log_', 'v_rcp_', 'v_rsq_', 'v_sqrt_', 'v_sin_', 'v_cos_')
def parse(line):
    t = line.split(';')[0].strip()
    if not t or t.endswith(':') or t.startswith('.'): return None
    parts = t.split(None, 1)
    op = parts[0]; rest = parts[1] if len(parts) > 1 else ''
    ops = [x.strip() for x in re.split(r',(?![^\[]*\])', rest)]
    return op, ops

def rw(op, ops):
    W, R = set(), set()
    def r(i):
        return set(regs_of(ops[i])) if i < len(ops) else set()
    allr = lambda lo: set().union(*[r(i) for i in range(lo, len(ops))]) if len(ops) > lo else set()
    if op.startswith('v_smfmac'):
        W |= r(0); R |= r(0) | r(1) | r(2) | r(3)
    elif op.startswith('v_mfma'):
        W |= r(0); R |= allr(1)
    elif op.startswith('v_cmp'):
        W |= r(0); R |= allr(1)
    elif op.startswith('v_permlane') and 'swap' in op:
        W |= r(0) | r(1); R |= r(0) | r(1)
    elif op.startswith(('v_fmac', 'v_pk_fmac', 'v_dot2c')):
        W |= r(0); R |= allr(0)
    elif op.startswith(('v_readfirstlane', 'v_readlane')):
        W |= r(0); R |= allr(1)
    elif op.startswith('v_'):
        W |= r(0); R |= allr(1)
        if '_co_' in op: W |= r(1)
        if op.startswith('v_cndmask') and len(ops) == 3: R.add(('s', 'vcc'))
        if 'dpp' in op or 'row_' in ' '.join(ops) or 'quad_perm' in ' '.join(ops): R |= r(0)
    elif op.startswith('ds_read') or op.startswith('ds_bpermute') or op.startswith('ds_swizzle'):
        W |= r(0); R |= allr(1)
    elif op.startswith('ds_write'):
        R |= allr(0)
    elif op.startswith(('global_load_lds', )):
        R |= allr(0)
    elif op.startswith(('global_load', 'buffer_load')):
        if 'lds' in ops[-1].split(): R |= allr(0)
        else: W |= r(0); R |= allr(1)
    elif op.startswith(('global_store', 'buffer_store')):
        R |= allr(0)
    elif op.startswith(('global_atomic', 'buffer_atomic')):
        if 'sc0' in ' '.join(ops): W |= r(0); R |= allr(1)
        else: R |= allr(0)
    elif op.startswith('s_'):
        if op.startswith(('s_cmp', 's_cbranch', 's_branch', 's_waitcnt', 's_barrier', 's_nop', 's_sleep', 's_endpgm', 's_setprio')):
            R |= allr(0)
        else:
            W |= r(0); R |= allr(1)
    return W, R

def is_valu(op): return op.startswith('v_') and not op.startswith(('v_mfma', 'v_smfmac'))
def is_mfma(op): return op.startswith(('v_mfma', 'v_smfmac'))
def is_vmem(op): return op.startswith(('global_', 'buffer_', 'flat_'))
def is_ds(op): return op.startswith('ds_')

def check_hazards(text, mfma_states=1, verbose=True):
    ins = []
    for ln, line in enumerate(text.split('\n'), 1):
        p = parse(line)
        if p: ins.append((ln, p[0], p[1], line.strip()))
    probs = []
    n = len(ins)
    info = [rw(op, ops) for (_, op, ops, _) in ins]
    def states(op, ops):
        if op == 's_nop': return int(ops[0], 0) + 1
        if is_mfma(op): return mfma_states
        return 1
    for i in range(n):
        ln, op, ops, txt = ins[i]
        W, R = info[i]
        dist = 0
        j = i - 1
        while j >= 0 and dist < 20:
            lj, opj, opsj, txtj = ins[j]
            Wj, Rj = info[j]
            if opj in ('s_endpgm', 's_branch'): break
            need = 0; why = ''
            vW = {x for x in Wj if x[0] in 'va'}
            sW = {x for x in Wj if x[0] == 's'}
            if is_valu(opj):
                if is_mfma(op) and vW & R: need, why = 2, 'VALU->MFMA'
                if ('permlane' in op) and vW & R: need, why = max(need, 2), 'VALU->permlane'
                if is_valu(op) and ('dpp' in op or 'row_' in txt or 'quad_perm' in txt) and vW & (R - set(regs_of(ops[0])) | set(regs_of(ops[1]) if len(ops) > 1 else [])):
                    if vW & set(regs_of(ops[1])): need, why = max(need, 2), 'VALU->DPP'
                if op.startswith(('v_readfirstlane', 'v_readlane')) and vW & R: need, why = max(need, 1), 'VALU->readlane'
                if opj.startswith(TRANS) and is_valu(op) and vW & R: need, why = max(need, 1), 'trans->VALU'
                if sW & R and is_vmem(op): need, why = max(need, 5), 'VALU sgpr->VMEM'
                if sW & R and is_valu(op): need, why = max(need, 2), 'VALU sgpr->VALU'
                if ('s', 'exec') in sW and is_mfma(op): need, why = max(need, 4), 'VALU exec->MFMA'
            if is_mfma(opj):
                if vW & (R | W):
                    if is_mfma(op):
                        d0 = set(regs_of(ops[0]))
                        c = set(regs_of(ops[3])) if op.startswith('v_mfma') and len(ops) > 3 else (d0 if op.startswith('v_smfmac') else set())
                        ab = set(regs_of(ops[1])) | set(regs_of(ops[2]))
                        if op.startswith('v_smfmac'): ab |= set(regs_of(ops[3]))
                        if vW & ab: need, why = 8, 'MFMA->MFMA A/B'
                        elif vW & c and (vW != c or opj != op): need, why = 6, 'MFMA->MFMA C overlap / different opcode'
                        elif vW & d0 and not (vW & c) and opj != op: need, why = 8, 'MFMA->MFMA WAW (conservative)'
                    else:
                        need, why = 8, 'MFMA->VALU/mem'
                cj = set(regs_of(opsj[3])) if opj.startswith('v_mfma') and len(opsj) > 3 else set(regs_of(opsj[0]))
                if is_valu(op) and cj & W: need, why = max(need, 3), 'MFMA srcC WAR'
            if (opj.startswith(('global_store_dwordx4', 'buffer_store_dwordx4', 'global_store_dwordx3'))) and is_valu(op):
                data = set(regs_of(opsj[1])) if opj.startswith('global') else set(regs_of(opsj[0]))
                if data & W: need, why = max(need, 2), 'store data WAR'
            if opj.startswith('s_mov') and opsj[0] == 'm0' and ('lds' in op or 'lds' in txt.split()): need, why = max(need, 1), 'm0->DMA'
            if need and dist < need:
                probs.append(f'line {ln}: [{txt}] needs {need} states after line {lj} [{txtj}] ({why}), has {dist}')
            dist += states(opj, opsj)
            j -= 1
    if verbose:
        for p in probs[:50]: print('HAZARD', p)
        print('hazard check:', len(probs), 'problems')
    return probs
```

```python
from common import *

L_MEM = 131072
L_QK  = L_MEM + 8192
L_O   = L_QK + 4096
L_KX  = L_O + 2048
L_VX  = L_KX + 8192
L_END = L_VX + 8192
L_MISC = L_END

vL16, vWU, vC, vQWA, vQWB, vQR, vKD, vOW, vPS, vFLG, vMS, vKM, vVM, vDUM, vRA, vIDX = range(16)
vSEL, vONE, vMA = 16, 20, 24
vQ0, vQ1, vK0, vK1, vV0, vV1 = 56, 60, 64, 68, 72, 76
WV = 128

sWQ, sWK, sWV, sWO, sM0, sWS, sDBG = 4, 6, 8, 10, 12, 14, 16
sH, sW, sSTEP = 18, 19, 20
sPSA, sPSB, sPLD, sGAT, sPUB, sPOI, sKX, sVX, sKM, sVM = 22, 24, 26, 28, 30, 32, 34, 36, 38, 40
sTAG, sSPIN, sC = 42, 43, 44
sM33, sMLO, sMPUB = 46, 48, 50
sT0, sT1, sT2, sT3 = 52, 53, 54, 55
sTS = 60
sKF, sMF = 76, 78

def own_t(w): return (2*w, 2*w+1)
def other_t(w): return [(2*w + 2 + i) % 8 for i in range(6)]
_regs = [('a', 8*i) for i in range(32)] + [('v', WV + 8*i) for i in range(16)]
def home(w, key):
    m = key[0]
    if m in 'QK':
        t = key[2]
        if t in own_t(w): return None
        return _regs[(0 if m == 'Q' else 12) + 6*key[1] + other_t(w).index(t)]
    if m == 'V':
        return _regs[24 + 8*key[1] + key[2]]
    if key[2] == 1: return None
    return _regs[40 + key[1]]
def res_index(w, key):
    m = key[0]
    if m in 'QK': return (0 if m == 'Q' else 4) + 2*own_t(w).index(key[2]) + key[1]
    return 8 + key[1]
def rstr(h, off=0, n=8):
    k, b = h
    return (a if k == 'a' else v)(b + off, n)
def res_read(A, w, key, dst):
    off = res_index(w, key)*2048
    A(f"ds_read_b128 {v(dst,4)}, {v(vRA)} offset:{off}")
    A(f"ds_read_b128 {v(dst+4,4)}, {v(vRA)} offset:{off+1024}")

def prologue_addresses(A):
    layB = True
    L, t1, t2, t3, n_, kq_ = 100, 101, 102, 103, 104, 105
    A(f"v_mov_b32 {v(L)}, v0")
    A(f"v_and_b32 {v(n_)}, 15, {v(L)}")
    A(f"v_lshrrev_b32 {v(kq_)}, 4, {v(L)}")
    A(f"v_lshlrev_b32 {v(t1)}, 4, {v(L)}")
    A(f"v_add_u32 {v(vC)}, {L_MEM}, {v(t1)}")
    A(f"s_lshl_b32 {s(sT0)}, {s(sW)}, 15")
    A(f"v_add_u32 {v(vRA)}, {s(sT0)}, {v(t1)}")
    A(f"v_lshlrev_b32 {v(vWU)}, 5, {v(L)}")
    A(f"v_mov_b32 {v(vL16)}, {v(t1)}")
    A(f"v_bfe_u32 {v(t2)}, {v(L)}, 1, 1")
    A(f"v_mov_b32 {v(vIDX)}, 0x44444444")
    A(f"v_mov_b32 {v(t3)}, 0xeeeeeeee")
    A(f"v_cmp_eq_u32 vcc, 1, {v(t2)}")
    A("s_nop 1")
    A(f"v_cndmask_b32 {v(vIDX)}, {v(vIDX)}, {v(t3)}, vcc")
    A(f"v_lshrrev_b32 {v(t2)}, 2, {v(n_)}")
    A(f"v_lshlrev_b32 {v(t3)}, 1, {v(kq_)}")
    A(f"v_xor_b32 {v(vQWA)}, {v(t3)}, {v(t2)}")
    A(f"v_xor_b32 {v(vQWB)}, 1, {v(vQWA)}")
    for r in (vQWA, vQWB):
        A(f"v_lshl_add_u32 {v(r)}, {v(t2)}, 4, {v(r)}")
        A(f"v_lshlrev_b32 {v(r)}, 4, {v(r)}")
        A(f"v_and_b32 {v(t3)}, 3, {v(n_)}")
        A(f"v_lshl_add_u32 {v(r)}, {v(t3)}, 2, {v(r)}")
        A(f"s_lshl_b32 {s(sT0)}, {s(sW)}, 10")
        A(f"s_add_u32 {s(sT0)}, {s(sT0)}, {L_QK}")
        A(f"v_add_u32 {v(r)}, {s(sT0)}, {v(r)}")
    A(f"v_xor_b32 {v(t2)}, {v(n_)}, {v(kq_)}")
    A(f"v_lshl_add_u32 {v(t2)}, {v(kq_)}, 4, {v(t2)}")
    A(f"v_lshlrev_b32 {v(t2)}, 4, {v(t2)}")
    A(f"v_add_u32 {v(vQR)}, {L_QK}, {v(t2)}")
    A(f"v_lshrrev_b32 {v(t2)}, 2, {v(n_)}")
    A(f"v_lshlrev_b32 {v(t2)}, 1, {v(t2)}")
    A(f"v_and_b32 {v(t3)}, 1, {v(n_)}")
    A(f"v_add3_u32 {v(t2)}, {v(t2)}, {v(t3)}, 8")
    A(f"v_xor_b32 {v(t2)}, {v(t2)}, {v(kq_)}")
    A(f"v_lshl_add_u32 {v(t2)}, {v(kq_)}, 4, {v(t2)}")
    A(f"v_lshlrev_b32 {v(t2)}, 4, {v(t2)}")
    A(f"v_add_u32 {v(vKD)}, {L_QK}, {v(t2)}")
    A(f"v_lshrrev_b32 {v(t2)}, 1, {v(n_)}")
    A(f"v_lshlrev_b32 {v(t2)}, 2, {v(t2)}")
    A(f"v_and_b32 {v(t3)}, 1, {v(n_)}")
    A(f"v_add_u32 {v(t2)}, {v(t2)}, {v(t3)}")
    A(f"s_and_b32 {s(sT0)}, {s(sW)}, 1")
    A(f"s_lshl_b32 {s(sT0)}, {s(sT0)}, 1")
    A(f"v_add_u32 {v(t2)}, {s(sT0)}, {v(t2)}")
    A(f"v_and_b32 {v(t2)}, 15, {v(t2)}")
    A(f"v_lshl_add_u32 {v(t2)}, {v(kq_)}, 4, {v(t2)}")
    A(f"v_lshlrev_b32 {v(t2)}, 4, {v(t2)}")
    A(f"s_lshr_b32 {s(sT0)}, {s(sW)}, 1")
    A(f"s_lshl_b32 {s(sT0)}, {s(sT0)}, 10")
    A(f"s_add_u32 {s(sT0)}, {s(sT0)}, {L_O}")
    A(f"v_add_u32 {v(vOW)}, {s(sT0)}, {v(t2)}")
    A(f"v_lshrrev_b32 {v(t2)}, 2, {v(n_)}")
    A(f"s_lshl_b32 {s(sT0)}, {s(sW)}, 3")
    A(f"v_add_u32 {v(t2)}, {s(sT0)}, {v(t2)}")
    A(f"v_lshlrev_b32 {v(t2)}, 13, {v(t2)}")
    A(f"v_and_b32 {v(t3)}, 3, {v(n_)}")
    A(f"v_lshlrev_b32 {v(t3)}, 4, {v(t3)}")
    A(f"v_lshl_add_u32 {v(t3)}, {v(kq_)}, {11 if layB else 6}, {v(t3)}")
    A(f"s_lshl_b32 {s(sT0)}, {s(sH)}, {6 if layB else 8}")
    A(f"v_add3_u32 {v(vPS)}, {v(t2)}, {v(t3)}, {s(sT0)}")
    A(f"v_bfe_u32 {v(t2)}, {v(L)}, 4, 1")
    A(f"v_lshlrev_b32 {v(t2)}, 1, {v(t2)}")
    A(f"v_bfe_u32 {v(t3)}, {v(L)}, 2, 1")
    A(f"v_add_u32 {v(t2)}, {v(t2)}, {v(t3)}")
    A(f"v_lshlrev_b32 {v(t2)}, 4, {v(t2)}")
    A(f"v_and_b32 {v(t3)}, 3, {v(L)}")
    A(f"v_lshl_add_u32 {v(t2)}, {v(t3)}, 2, {v(t2)}")
    A(f"s_lshr_b32 {s(sT0)}, {s(sH)}, 2")
    A(f"s_lshl_b32 {s(sT0)}, {s(sT0)}, 10")
    A(f"s_and_b32 {s(sT1)}, {s(sH)}, 3")
    A(f"s_lshl_b32 {s(sT1)}, {s(sT1)}, 8")
    A(f"s_add_u32 {s(sT0)}, {s(sT0)}, {s(sT1)}")
    A(f"s_lshl_b32 {s(sT1)}, {s(sW)}, 6")
    A(f"s_add_u32 {s(sT0)}, {s(sT0)}, {s(sT1)}")
    A(f"v_add_u32 {v(vMS)}, {s(sT0)}, {v(t2)}")
    A(f"v_lshrrev_b32 {v(t2)}, 2, {v(n_)}")
    A(f"v_lshlrev_b32 {v(t2)}, 1, {v(t2)}")
    A(f"v_and_b32 {v(t3)}, 1, {v(n_)}")
    A(f"v_add_u32 {v(t2)}, {v(t2)}, {v(t3)}")
    A(f"v_lshlrev_b32 {v(t2)}, 4, {v(t2)}")
    A(f"v_lshl_add_u32 {v(t2)}, {v(kq_)}, 7, {v(t2)}")
    A(f"s_lshl_b32 {s(sT0)}, {s(sW)}, 9")
    A(f"v_add_u32 {v(vKM)}, {s(sT0)}, {v(t2)}")
    A(f"v_lshlrev_b32 {v(t2)}, 2, {v(L)}")
    A(f"s_lshl_b32 {s(sT0)}, {s(sW)}, 9")
    A(f"v_add_u32 {v(vVM)}, {s(sT0)}, {v(t2)}")
    A(f"v_and_b32 {v(t2)}, 7, {v(n_)}")
    for jj in range(4):
        A(f"v_mov_b32 {v(vSEL+jj)}, 0")
        A(f"v_mov_b32 {v(t3)}, 0x3f80")
        A(f"v_cmp_eq_u32 vcc, {2*jj}, {v(t2)}")
        A("s_nop 1")
        A(f"v_cndmask_b32 {v(vSEL+jj)}, {v(vSEL+jj)}, {v(t3)}, vcc")
        A(f"v_mov_b32 {v(t3)}, 0x3f800000")
        A(f"v_cmp_eq_u32 vcc, {2*jj+1}, {v(t2)}")
        A("s_nop 1")
        A(f"v_cndmask_b32 {v(vSEL+jj)}, {v(vSEL+jj)}, {v(t3)}, vcc")
        A(f"v_mov_b32 {v(vONE+jj)}, 0x3f803f80")
    A(f"s_mov_b32 {s(sM33)}, 0x33333333"); A(f"s_mov_b32 {s(sM33+1)}, 0x33333333")
    A(f"s_mov_b32 {s(sMLO)}, 0x00ff00ff"); A(f"s_mov_b32 {s(sMLO+1)}, 0x00ff00ff")
    A(f"s_mov_b32 {s(sMPUB)}, 0x00ff00ff"); A(f"s_mov_b32 {s(sMPUB+1)}, 0")

vD1, vD2, vT1, vT1b, vT2, vT2b, vT1h, vT1bh, vT2h, vT2bh = range(106, 116)
def loader_addresses(A):
    L, t1, t2, t3, n_, kq_ = 100, 101, 102, 103, 104, 105
    A(f"v_lshrrev_b32 {v(t1)}, 5, {v(L)}")
    A(f"v_lshlrev_b32 {v(t1)}, 1, {v(t1)}")
    A(f"s_lshl_b32 {s(sT0)}, {s(sW)}, 2")
    A(f"v_or_b32 {v(t1)}, {s(sT0)}, {v(t1)}")
    A(f"v_xor_b32 {v(t1)}, {v(t1)}, {v(n_)}")
    A(f"v_lshlrev_b32 {v(t1)}, 4, {v(t1)}")
    A(f"s_lshl_b32 {s(sT0)}, {s(sW)}, 4")
    A(f"v_add_u32 {v(t2)}, {s(sT0)}, {v(kq_)}")
    A(f"v_lshlrev_b32 {v(t2)}, 13, {v(t2)}")
    A(f"s_lshl_b32 {s(sT0)}, {s(sH)}, 8")
    A(f"v_add3_u32 {v(vD1)}, {v(t1)}, {v(t2)}, {s(sT0)}")
    A(f"s_and_b32 {s(sT0)}, {s(sW)}, 1")
    A(f"s_lshl_b32 {s(sT0)}, {s(sT0)}, 1")
    A(f"s_lshr_b32 {s(sT1)}, {s(sW)}, 1")
    A(f"s_lshl_b32 {s(sT1)}, {s(sT1)}, 3")
    A(f"s_or_b32 {s(sT0)}, {s(sT0)}, {s(sT1)}")
    A(f"v_and_b32 {v(t1)}, 1, {v(kq_)}")
    A(f"v_lshlrev_b32 {v(t1)}, 2, {v(t1)}")
    A(f"v_or_b32 {v(t1)}, {s(sT0)}, {v(t1)}")
    A(f"v_xor_b32 {v(t1)}, {v(t1)}, {v(n_)}")
    A(f"v_lshrrev_b32 {v(t2)}, 2, {v(t1)}")
    A(f"v_lshlrev_b32 {v(t2)}, 8, {v(t2)}")
    A(f"v_and_b32 {v(t1)}, 3, {v(t1)}")
    A(f"v_lshl_add_u32 {v(t1)}, {v(t1)}, 4, {v(t2)}")
    A(f"s_lshl_b32 {s(sT0)}, {s(sW)}, 4")
    A(f"v_add_u32 {v(t2)}, {s(sT0)}, {v(kq_)}")
    A(f"v_lshlrev_b32 {v(t2)}, 10, {v(t2)}")
    A(f"s_lshl_b32 {s(sT0)}, {s(sH)}, 17")
    A(f"v_add3_u32 {v(vD2)}, {v(t1)}, {v(t2)}, {s(sT0)}")
    A(f"v_lshrrev_b32 {v(t1)}, 5, {v(L)}")
    A(f"v_bfe_u32 {v(t2)}, {v(L)}, 4, 1")
    A(f"v_lshlrev_b32 {v(t1)}, 2, {v(t1)}")
    A(f"v_lshl_add_u32 {v(t1)}, {v(t2)}, 1, {v(t1)}")
    A(f"v_bfe_u32 {v(t3)}, {v(L)}, 2, 2")
    A(f"v_lshl_add_u32 {v(t1)}, {v(t3)}, 4, {v(t1)}")
    A(f"v_lshlrev_b32 {v(t1)}, 8, {v(t1)}")
    A(f"v_lshlrev_b32 {v(t2)}, 1, {v(t2)}")
    A(f"v_lshl_add_u32 {v(t2)}, {v(t3)}, 2, {v(t2)}")
    A(f"v_bfe_u32 {v(t3)}, {v(L)}, 1, 1")
    A(f"s_lshl_b32 {s(sT0)}, {s(sW)}, 2")
    A(f"v_or_b32 {v(t3)}, {s(sT0)}, {v(t3)}")
    A(f"v_xor_b32 {v(t2)}, {v(t2)}, {v(t3)}")
    A(f"v_lshl_add_u32 {v(t1)}, {v(t2)}, 4, {v(t1)}")
    A(f"v_and_b32 {v(t3)}, 1, {v(L)}")
    A(f"v_lshl_add_u32 {v(vT1)}, {v(t3)}, 3, {v(t1)}")
    A(f"v_xor_b32 {v(vT1b)}, 32, {v(vT1)}")
    A(f"v_lshrrev_b32 {v(t1)}, 5, {v(L)}")
    A(f"v_bfe_u32 {v(t2)}, {v(L)}, 4, 1")
    A(f"v_lshlrev_b32 {v(t1)}, 2, {v(t1)}")
    A(f"v_lshl_add_u32 {v(t1)}, {v(t2)}, 4, {v(t1)}")
    A(f"v_bfe_u32 {v(t3)}, {v(L)}, 2, 1")
    A(f"v_add_u32 {v(t1)}, {v(t1)}, {v(t3)}")
    A(f"v_lshlrev_b32 {v(t2)}, 1, {v(t2)}")
    A(f"v_lshl_add_u32 {v(t2)}, {v(t3)}, 2, {v(t2)}")
    A(f"v_bfe_u32 {v(t3)}, {v(L)}, 3, 1")
    A(f"v_lshl_add_u32 {v(t1)}, {v(t3)}, 5, {v(t1)}")
    A(f"v_lshl_add_u32 {v(t2)}, {v(t3)}, 3, {v(t2)}")
    A(f"v_lshlrev_b32 {v(t1)}, 8, {v(t1)}")
    A(f"v_bfe_u32 {v(t3)}, {v(L)}, 1, 1")
    A(f"s_lshl_b32 {s(sT0)}, {s(sW)}, 2")
    A(f"v_or_b32 {v(t3)}, {s(sT0)}, {v(t3)}")
    A(f"v_xor_b32 {v(t2)}, {v(t2)}, {v(t3)}")
    A(f"v_lshl_add_u32 {v(t1)}, {v(t2)}, 4, {v(t1)}")
    A(f"v_and_b32 {v(t3)}, 1, {v(L)}")
    A(f"v_lshl_add_u32 {v(vT2)}, {v(t3)}, 3, {v(t1)}")
    A(f"v_xor_b32 {v(vT2b)}, 32, {v(vT2)}")
    for lo, hi in ((vT1, vT1h), (vT1b, vT1bh), (vT2, vT2h), (vT2b, vT2bh)):
        A(f"v_add_u32 {v(hi)}, 0x10000, {v(lo)}")

CHUNKS = [(m, t) for m in 'QKV' for t in range(8)] + [('O', (0, Tp)) for Tp in range(4)] + [('O', (1, Tp)) for Tp in range(4)]
SLOTS = [c % 8 for c in range(28)] + [4, 6, 0, 2]
ISSUE_AT = {c: c - 7 for c in range(7, 29)}
ISSUE_AT.update({29: 23, 30: 25, 31: 27})
PARK = 24
def loader(A, w):
    wptr = {'Q': sWQ, 'K': sWK, 'V': sWV, 'O': sWO}
    issued = []
    def issue(c):
        m, x = CHUNKS[c]; slot = SLOTS[c]
        for i in range(4):
            if m == 'O': goff = (64*x[0] + 4*i)*1024 + 64*x[1]; vD = vD2
            else: goff = (64*x + 4*i)*8192; vD = vD1
            add64(A, sT2, wptr[m], goff)
            A(f"s_mov_b32 m0, {slot*16384 + w*4096 + i*1024}")
            A("s_nop 0")
            A(f"global_load_lds_dwordx4 {v(vD)}, {s(sT2,2)}")
        issued.append(c)
    for c in range(7): issue(c)
    for c in range(32):
        m, x = CHUNKS[c]; slot = SLOTS[c]
        after = len(issued) - 1 - issued.index(c)
        A(f"s_waitcnt vmcnt({4*after})")
        A("s_barrier")
        for c2, at in ISSUE_AT.items():
            if at == c: issue(c2)
        ores = (m == 'O' and x[0] == 1)
        for P in range(2):
            key = ('O', 2*x[1] + P, x[0]) if m == 'O' else (m, P, x)
            h = home(w, key)
            if m == 'O': base = [[vT2, vT2h], [vT2b, vT2bh]][P][slot >> 2]
            else: base = [[vT1, vT1h], [vT1b, vT1bh]][P][slot >> 2]
            for u in range(4):
                ro = (8*(u >> 1) + 2*(u & 1)) if m == 'O' else (8*(u >> 1) + (u & 1))
                off = (slot & 3)*16384 + ro*256
                if h is not None: dst = rstr(h, 2*u, 2)
                elif ores: dst = v((88, 116)[P] + 2*u, 2)
                else: dst = v(PARK + 8*res_index(w, key) + 2*u, 2)
                A(f"ds_read_b64_tr_b16 {dst}, {v(base)} offset:{off}")
        A("s_waitcnt lgkmcnt(0)")
        if ores:
            for P in range(2):
                off = res_index(w, ('O', 2*x[1] + P, 1))*2048
                A(f"ds_write_b128 {v(vRA)}, {v((88,116)[P],4)} offset:{off}")
                A(f"ds_write_b128 {v(vRA)}, {v((88,116)[P]+4,4)} offset:{off+1024}")
            A("s_waitcnt lgkmcnt(0)")
    A("s_barrier")
    for i in range(8):
        A(f"ds_write_b128 {v(vRA)}, {v(PARK+8*i,4)} offset:{i*2048}")
        A(f"ds_write_b128 {v(vRA)}, {v(PARK+8*i+4,4)} offset:{i*2048+1024}")
    A("s_waitcnt lgkmcnt(0)")

class Stamp:
    def __init__(self, on): self.on = on or []
    def __call__(self, A, name):
        if name not in self.on: return
        k = self.on.index(name)
        A(f"s_memtime {s(sTS,2)}")
        A("s_waitcnt lgkmcnt(0)")
        A(f"s_sub_u32 {s(sT0)}, {s(sTS)}, {s(sTS+2)}")
        A(f"s_add_u32 {s(sTS+4+k)}, {s(sTS+4+k)}, {s(sT0)}")
        A(f"s_mov_b32 {s(sTS+2)}, {s(sTS)}")

def own_stage(w):
    t0, t1 = own_t(w)
    blocks = [vMA + 8*u for u in range(4) if u != w][:2]
    return {('Q',0,t0): blocks[0], ('Q',1,t0): blocks[1], ('Q',0,t1): 80, ('Q',1,t1): 88,
            ('K',0,t0): 96, ('K',1,t0): 104, ('K',0,t1): 112, ('K',1,t1): 120}
def stage_own(A, w):
    for key, dst in own_stage(w).items(): res_read(A, w, key, dst)
ACC = {('Q',0): vQ0, ('Q',1): vQ1, ('K',0): vK0, ('K',1): vK1, ('V',0): vV0, ('V',1): vV1}

def step_loop(A, w, pfx, st_team='', stamps=None, spin_max=2000000, slR=2, slG=0, nsteps=64):
    st_pub = 'sc1'
    T = Stamp(stamps)
    lb = f"{pfx}W{w}"
    FAIL = f"L_{pfx}_fail"
    t0, t1 = own_t(w)
    oth = other_t(w)
    stg = own_stage(w)
    ostage = {}
    def bfrag(key):
        h = home(w, key)
        if h is not None: return rstr(h)
        if key in stg: return v(stg[key], 8)
        return v(ostage[key], 8)
    def smf(m, P, t):
        A(f"v_smfmac_f32_16x16x64_bf16 {v(ACC[(m,P)],4)}, {v(vMA+4*t,4)}, {bfrag((m,P,t))}, {v(vIDX)}")
    vq = [(P, t) for t in (t0, t1) for P in range(2)] + [(P, t) for t in oth for P in range(2)]
    def vfill(n):
        for _ in range(n):
            if vq: P, t = vq.pop(0); smf('V', P, t)
    def add2(r):
        A(f"v_add_f32 {v(r)}, {v(r)}, {v(r+2)}"); A(f"v_add_f32 {v(r+1)}, {v(r+1)}, {v(r+3)}")
    A.label(f"L_step_{lb}")
    A.label(f"L_pollG_{lb}")
    A(f"global_load_dwordx4 {v(vMA+4*t0,4)}, {v(vL16)}, {s(sGAT,2)} sc1")
    A(f"global_load_dwordx4 {v(vMA+4*t1,4)}, {v(vL16)}, {s(sGAT,2)} offset:1024 sc1")
    A(f"s_add_u32 {s(sSPIN)}, {s(sSPIN)}, 1")
    A(f"s_cmp_gt_u32 {s(sSPIN)}, {spin_max}")
    A(f"s_cbranch_scc1 {FAIL}")
    a0, b0 = vMA+4*t0, vMA+4*t1
    A("s_waitcnt vmcnt(0)")
    A(f"v_max_u32 {v(vDUM)}, {v(a0)}, {v(b0)}")
    A(f"v_cmp_eq_u32 vcc, -1, {v(vDUM)}")
    A(f"s_cbranch_vccnz L_pollG_{lb}")
    A.label(f"L_entry_{lb}")
    T(A, 'gather')
    A(f"ds_write_b128 {v(vC)}, {v(vMA+4*t0,4)} offset:{t0*1024}")
    A(f"ds_write_b128 {v(vC)}, {v(vMA+4*t1,4)} offset:{t1*1024}")
    smf('Q', 0, t0)
    A(f"s_mov_b32 m0, {L_VX + w*2048}")
    smf('Q', 1, t0); smf('Q', 0, t1); smf('Q', 1, t1); smf('K', 0, t0); smf('K', 1, t0)
    A("s_waitcnt lgkmcnt(0)")
    A("s_barrier")
    T(A, 'B1')
    for i, t in enumerate(oth):
        A(f"ds_read_b128 {v(vMA+4*t,4)}, {v(vC)} offset:{t*1024}")
        if i == 1: smf('K', 0, t1)
        if i == 3: smf('K', 1, t1)
    vfill(1)
    A(f"global_load_lds_dwordx4 {v(vL16)}, {s(sVX,2)} sc1")
    vfill(1)
    A(f"global_load_lds_dwordx4 {v(vL16)}, {s(sVX,2)} offset:1024 sc1")
    A(f"v_mov_b32 {v(vDUM)}, -1")
    vfill(1)
    A(f"s_mov_b64 exec, {s(sMPUB,2)}")
    A(f"global_store_dword {v(vMS)}, {v(vDUM)}, {s(sPOI,2)} {st_team}")
    A("s_mov_b64 exec, 1")
    A(f"global_load_dword {v(vFLG)}, {v(vL16)}, {s(sKF,2)} sc1")
    nmf = 0
    if w == 0:
        A(f"v_mov_b32 {v(vDUM)}, 1")
        A(f"global_store_dword {v(vL16)}, {v(vDUM)}, {s(sMF,2)} sc1")
        nmf = 1
    A("s_mov_b64 exec, -1")
    vfill(1)
    add64(A, sT2, sVX, 32*8192)
    A(f"global_load_dword {v(vDUM)}, {v(vWU)}, {s(sT2,2)} sc1")
    KX = 80
    kxq = [(U, ks) for ks in range(4) for U in range(2)]
    nlds = 0
    for i, t in enumerate(oth):
        A(f"s_waitcnt lgkmcnt({5 - i + nlds})")
        smf('Q', 0, t)
        if kxq and i < 4:
            U, ks = kxq.pop(0); A(f"ds_read_b128 {v(KX+16*U+4*ks,4)}, {v(vC)} offset:{L_KX-L_MEM + U*4096 + ks*1024}"); nlds += 1
        smf('Q', 1, t)
        if kxq and i < 4:
            U, ks = kxq.pop(0); A(f"ds_read_b128 {v(KX+16*U+4*ks,4)}, {v(vC)} offset:{L_KX-L_MEM + U*4096 + ks*1024}"); nlds += 1
    assert not kxq
    T(A, 'q')
    krest = [(P, t) for t in oth for P in range(2)]
    def kfill(n):
        for _ in range(n):
            P, t = krest.pop(0); smf('K', P, t)
    kfill(2)
    A("s_nop 0")
    add2(vQ0)
    kfill(1)
    add2(vQ1)
    A(f"v_cvt_pk_bf16_f32 {v(vQ0+2)}, {v(vQ0)}, {v(vQ1)}")
    A(f"v_cvt_pk_bf16_f32 {v(vQ0+3)}, {v(vQ0+1)}, {v(vQ1+1)}")
    A(f"ds_write_b32 {v(vQWA)}, {v(vQ0+2)}")
    A(f"ds_write_b32 {v(vQWB)}, {v(vQ0+3)}")
    kfill(6)
    A("s_waitcnt lgkmcnt(0)")
    A("s_barrier")
    A(f"s_mov_b32 m0, {L_KX + w*2048}")
    QF = 112
    for ks in range(4):
        A(f"ds_read_b128 {v(QF+4*ks,4)}, {v(vQR)} offset:{ks*1024}")
        if ks < 3: kfill(1)
        if ks == 0: A(f"global_load_lds_dwordx4 {v(vL16)}, {s(sKX,2)} sc1")
        if ks == 1: A(f"global_load_lds_dwordx4 {v(vL16)}, {s(sKX,2)} offset:1024 sc1")
    assert not krest
    T(A, 'k')
    vfill(2)
    A("s_nop 0")
    add2(vK0); add2(vK1)
    A(f"v_cvt_pk_bf16_f32 {v(vK0+2)}, {v(vK0)}, {v(vK1)}")
    A(f"v_cvt_pk_bf16_f32 {v(vK0+3)}, {v(vK0+1)}, {v(vK1+1)}")
    A("s_waitcnt lgkmcnt(0)")
    A(f"ds_write_b32 {v(vQWA)}, {v(vK0+2)} offset:128")
    A(f"ds_write_b32 {v(vQWB)}, {v(vK0+3)} offset:128")
    S1, S2, S0 = 56, 60, 64
    for ks in range(4):
        c = (lambda r: '0' if ks == 0 else v(r,4))
        A(f"v_mfma_f32_16x16x32_bf16 {v(S1,4)}, {v(KX+4*ks,4)}, {v(QF+4*ks,4)}, {c(S1)}")
        A(f"v_mfma_f32_16x16x32_bf16 {v(S2,4)}, {v(KX+16+4*ks,4)}, {v(QF+4*ks,4)}, {c(S2)}")
    A(f"s_waitcnt vmcnt({5 + nmf}) lgkmcnt(0)")
    A("s_barrier")
    T(A, 'B2b')
    KD = 80
    VX = 104
    for ks in range(4):
        A(f"ds_read_b128 {v(KD+4*ks,4)}, {v(vKD)} offset:{ks*1024}")
    A(f"ds_read_b128 {v(VX,4)}, {v(vC)} offset:{L_VX-L_MEM + (2*w)*1024}")
    A(f"ds_read_b128 {v(VX+4,4)}, {v(vC)} offset:{L_VX-L_MEM + (2*w+1)*1024}")
    vfill(5)
    for ks in range(4):
        A(f"s_waitcnt lgkmcnt({5-ks})")
        A(f"v_mfma_f32_16x16x32_bf16 {v(S0,4)}, {v(KD+4*ks,4)}, {v(QF+4*ks,4)}, {'0' if ks == 0 else v(S0,4)}")
    A(f"s_mov_b64 exec, {s(sM33,2)}")
    A(f"global_store_dwordx4 {v(vKM)}, {v(KD+4*w,4)}, {s(sKM,2)} {st_pub}")
    A("s_mov_b64 exec, -1")
    vfill(16)
    assert not vq
    T(A, 'S')
    for Tt in range(4):
        ostage[('O', Tt, 1)] = vMA + 8*Tt
    oq = [(('O', Tt, 1), vMA + 8*Tt) for Tt in range(4)]
    Mx, Tm = 68, 69
    A(f"v_max3_f32 {v(Mx)}, {v(S1)}, {v(S1+1)}, {v(S1+2)}")
    A(f"v_max3_f32 {v(Mx)}, {v(Mx)}, {v(S1+3)}, {v(S2)}")
    A(f"v_max3_f32 {v(Mx)}, {v(Mx)}, {v(S2+1)}, {v(S2+2)}")
    A(f"v_max3_f32 {v(Mx)}, {v(Mx)}, {v(S2+3)}, {v(S0)}")
    A(f"v_max_f32 {v(Mx)}, {v(Mx)}, {v(S0+1)}")
    A(f"v_mov_b32 {v(Tm)}, {v(Mx)}")
    key, dst = oq.pop(0); res_read(A, w, key, dst)
    A(f"v_permlane32_swap_b32 {v(Mx)}, {v(Tm)}")
    A(f"v_max_f32 {v(Mx)}, {v(Mx)}, {v(Tm)}")
    A(f"v_mov_b32 {v(Tm)}, {v(Mx)}")
    key, dst = oq.pop(0); res_read(A, w, key, dst)
    A(f"v_permlane16_swap_b32 {v(Mx)}, {v(Tm)}")
    A(f"v_max_f32 {v(Mx)}, {v(Mx)}, {v(Tm)}")
    A(f"v_mul_f32 {v(Mx)}, {s(sC)}, {v(Mx)}")
    for r in (S1, S1+2, S2, S2+2, S0):
        A(f"v_pk_fma_f32 {v(r,2)}, {v(r,2)}, {s(sC,2)}, {v(Mx,2)} op_sel_hi:[1,0,0] neg_lo:[0,0,1] neg_hi:[0,0,1]")
    for r in (S1, S1+1, S1+2, S1+3, S2, S2+1, S2+2, S2+3, S0, S0+1):
        A(f"v_exp_f32 {v(r)}, {v(r)}")
    T(A, 'exp')
    Px, Pm = 96, 100
    VM0, VM1 = 112, 114
    A(f"v_cvt_pk_bf16_f32 {v(Px)}, {v(S1)}, {v(S1+1)}")
    A(f"v_cvt_pk_bf16_f32 {v(Px+1)}, {v(S1+2)}, {v(S1+3)}")
    A(f"v_cvt_pk_bf16_f32 {v(Px+2)}, {v(S2)}, {v(S2+1)}")
    A(f"v_cvt_pk_bf16_f32 {v(Px+3)}, {v(S2+2)}, {v(S2+3)}")
    A(f"v_cvt_pk_bf16_f32 {v(Pm)}, {v(S0)}, {v(S0+1)}")
    A(f"v_mov_b32 {v(Pm+1)}, 0")
    O0, O1, LL = 80, 84, 88
    A("s_waitcnt lgkmcnt(4)")
    A(f"v_mfma_f32_16x16x32_bf16 {v(LL,4)}, {v(vONE,4)}, {v(Px,4)}, 0")
    add2(vV0)
    A(f"v_mfma_f32_16x16x32_bf16 {v(O0,4)}, {v(VX,4)}, {v(Px,4)}, 0")
    add2(vV1)
    A(f"v_mfma_f32_16x16x32_bf16 {v(O1,4)}, {v(VX+4,4)}, {v(Px,4)}, 0")
    A(f"v_cvt_pk_bf16_f32 {v(VM0)}, {v(vV0)}, {v(vV0+1)}")
    A(f"v_cvt_pk_bf16_f32 {v(VM1)}, {v(vV1)}, {v(vV1+1)}")
    A(f"v_mov_b32 {v(VM0+1)}, 0")
    A(f"v_mov_b32 {v(VM1+1)}, 0")
    A(f"v_mfma_f32_16x16x16_bf16 {v(LL,4)}, {v(vONE,2)}, {v(Pm,2)}, {v(LL,4)}")
    key, dst = oq.pop(0); res_read(A, w, key, dst)
    A(f"v_mfma_f32_16x16x16_bf16 {v(O0,4)}, {v(VM0,2)}, {v(Pm,2)}, {v(O0,4)}")
    key, dst = oq.pop(0); res_read(A, w, key, dst)
    A(f"v_mfma_f32_16x16x16_bf16 {v(O1,4)}, {v(VM1,2)}, {v(Pm,2)}, {v(O1,4)}")
    for Tt in (4, 5, 6):
        ostage[('O', Tt, 1)] = 56 + 8*(Tt-4)
    res_read(A, w, ('O', 4, 1), 56)
    A(f"global_store_dword {v(vVM)}, {v(VM0)}, {s(sVM,2)} {st_pub}")
    A(f"global_store_dword {v(vVM)}, {v(VM1)}, {s(sVM,2)} offset:256 {st_pub}")
    A(f"s_cmp_eq_u32 {s(sSTEP)}, {nsteps-1}")
    A(f"s_cbranch_scc1 L_last_{lb}")
    RC = 92
    A(f"v_rcp_f32 {v(RC)}, {v(LL)}")
    res_read(A, w, ('O', 5, 1), 64)
    for r in (O0, O0+2, O1, O1+2):
        A(f"v_pk_mul_f32 {v(r,2)}, {v(r,2)}, {v(RC,2)} op_sel_hi:[1,0]")
    OC = 120
    A(f"v_cvt_pk_bf16_f32 {v(OC)}, {v(O0)}, {v(O0+1)}")
    A(f"v_cvt_pk_bf16_f32 {v(OC+1)}, {v(O0+2)}, {v(O0+3)}")
    A(f"v_cvt_pk_bf16_f32 {v(OC+2)}, {v(O1)}, {v(O1+1)}")
    A(f"v_cvt_pk_bf16_f32 {v(OC+3)}, {v(O1+2)}, {v(O1+3)}")
    A(f"s_mov_b64 exec, {s(sMLO,2)}")
    A(f"ds_write_b128 {v(vOW)}, {v(OC,4)}")
    A("s_mov_b64 exec, -1")
    T(A, 'PV')
    res_read(A, w, ('O', 6, 1), 72)
    WA = 80
    zero_regs(A, WA, 32)
    A("s_waitcnt lgkmcnt(0)")
    A("s_barrier")
    T(A, 'B3')
    OA = 112
    A(f"ds_read_b128 {v(OA,4)}, {v(vC)} offset:{L_O-L_MEM}")
    A(f"ds_read_b128 {v(OA+4,4)}, {v(vC)} offset:{L_O-L_MEM+1024}")
    A("s_waitcnt lgkmcnt(0)")
    CH = 120
    ostage[('O', 7, 1)] = vMA
    def post(Tt, h=None):
        if h in (None, 0): A(f"v_add_f32 {v(WA+4*Tt)}, {v(WA+4*Tt)}, {v(WA+4*Tt+2)}")
        if h in (None, 1): A(f"v_add_f32 {v(WA+4*Tt+1)}, {v(WA+4*Tt+1)}, {v(WA+4*Tt+3)}")
    def post2(Tt): A(f"v_cvt_pk_bf16_f32 {v(CH+Tt)}, {v(WA+4*Tt)}, {v(WA+4*Tt+1)}")
    def store(a_):
        A(f"v_and_or_b32 {v(CH+4*a_)}, {v(CH+4*a_)}, -2, {s(sTAG)}")
        A(f"global_store_dwordx4 {v(vPS)}, {v(CH+4*a_,4)}, {s(sPSA if a_ == 0 else sPSB,2)} {st_team}")
    seq = [(Tt, ks2) for Tt in range(8) for ks2 in range(2)]
    for i, (Tt, ks2) in enumerate(seq):
        if (Tt, ks2) == (7, 1): A("s_waitcnt lgkmcnt(0)")
        A(f"v_smfmac_f32_16x16x64_bf16 {v(WA+4*Tt,4)}, {v(OA+4*ks2,4)}, {bfrag(('O',Tt,ks2))}, {v(vIDX)}")
        if i == 1: res_read(A, w, ('O', 7, 1), vMA)
        if i >= 4 and i % 2 == 0: post((i-4)//2, 0)
        if i >= 5 and i % 2 == 1: post((i-5)//2, 1); post2((i-5)//2)
        if i == 12: store(0)
    A("s_nop 1")
    post(6)
    post2(6)
    A("s_nop 2")
    post(7)
    post2(7)
    store(1)
    T(A, 'Wo')
    add64(A, sKX, sKX, 32*8192); add64(A, sVX, sVX, 32*8192)
    add64(A, sKM, sKM, 32*2048); add64(A, sVM, sVM, 32*2048)
    RL, RA = 56, 64
    stage_own(A, w)
    if slR: A(f"s_sleep {slR}")
    A.label(f"L_pollR_{lb}")
    A(f"global_load_dwordx4 {v(RL,4)}, {v(vL16)}, {s(sPLD,2)} sc1")
    A(f"global_load_dwordx4 {v(RL+4,4)}, {v(vL16)}, {s(sPLD,2)} offset:1024 sc1")
    A(f"s_add_u32 {s(sSPIN)}, {s(sSPIN)}, 1")
    A(f"s_cmp_gt_u32 {s(sSPIN)}, {spin_max}")
    A(f"s_cbranch_scc1 {FAIL}")
    A("s_waitcnt vmcnt(0)")
    A(f"v_bitop3_b32 {v(RA)}, {v(RL)}, {v(RL+4)}, {s(sTAG)} bitop3:0x7e")
    A(f"v_and_b32 {v(RA)}, 1, {v(RA)}")
    A(f"v_cmp_ne_u32 vcc, 0, {v(RA)}")
    A(f"s_cbranch_vccnz L_pollR_{lb}")
    T(A, 'pollR')
    A(f"v_mfma_f32_16x16x32_bf16 {v(RA,4)}, {v(vSEL,4)}, {v(RL,4)}, 0")
    A(f"v_mfma_f32_16x16x32_bf16 {v(RA,4)}, {v(vSEL,4)}, {v(RL+4,4)}, {v(RA,4)}")
    A(f"s_add_u32 {s(sSTEP)}, {s(sSTEP)}, 1")
    A(f"s_mov_b32 {s(sPOI)}, {s(sGAT)}"); A(f"s_mov_b32 {s(sPOI+1)}, {s(sGAT+1)}")
    A(f"s_sub_u32 {s(sPOI)}, {s(sPOI)}, {w*2048}"); A(f"s_subb_u32 {s(sPOI+1)}, {s(sPOI+1)}, 0")
    add64(A, sGAT, sPUB, w*2048)
    A("s_nop 0")
    x0, x1, x2, x3 = RA, RA+1, RA+2, RA+3
    dp = "row_mask:0xf"
    A(f"v_add_f32_dpp {v(x0)}, {v(x0)}, {v(x0)} row_ror:8 {dp} bank_mask:0x3")
    A(f"v_add_f32_dpp {v(x1)}, {v(x1)}, {v(x1)} row_ror:8 {dp} bank_mask:0x3")
    A(f"v_add_f32_dpp {v(x0)}, {v(x2)}, {v(x2)} row_ror:8 {dp} bank_mask:0xc")
    A(f"v_add_f32_dpp {v(x1)}, {v(x3)}, {v(x3)} row_ror:8 {dp} bank_mask:0xc")
    A("s_nop 0")
    A(f"v_add_f32_dpp {v(x0)}, {v(x0)}, {v(x0)} row_shl:4 {dp} bank_mask:0x5")
    A(f"v_add_f32_dpp {v(x0)}, {v(x1)}, {v(x1)} row_shr:4 {dp} bank_mask:0xa")
    A("s_nop 1")
    A(f"v_mov_b32_dpp {v(x1)}, {v(x0)} row_ror:8 {dp} bank_mask:0xf")
    A(f"v_cvt_pk_bf16_f32 {v(x0)}, {v(x0)}, {v(x1)}")
    A(f"v_min_u32 {v(x0)}, -2, {v(x0)}")
    A(f"s_mov_b64 exec, {s(sMPUB,2)}")
    A(f"global_store_dword {v(vMS)}, {v(x0)}, {s(sPUB,2)} {st_team}")
    A("s_mov_b64 exec, -1")
    T(A, 'red')
    A(f"v_readfirstlane_b32 {s(sT3)}, {v(vFLG)}")
    A(f"s_add_u32 {s(sT0)}, {s(sSTEP)}, 1")
    A(f"s_and_b32 {s(sT0)}, {s(sT0)}, 3")
    A(f"s_lshl_b32 {s(sT0)}, {s(sT0)}, 13")
    A(f"s_add_u32 {s(sT0)}, {s(sT0)}, {hex(WS_MEM)}")
    A(f"s_add_u32 {s(sPUB)}, {s(sWS)}, {s(sT0)}"); A(f"s_addc_u32 {s(sPUB+1)}, {s(sWS+1)}, 0")
    part_bases(A, w)
    A(f"s_bfe_u32 {s(sTAG)}, {s(sSTEP)}, 0x10001")
    zero_regs(A, 56, 24)
    A(f"s_mov_b32 {s(sSPIN)}, 0")
    A(f"s_cmp_lg_u32 {s(sT3)}, 0")
    A(f"s_cbranch_scc1 L_kvok_{lb}")
    A(f"s_add_u32 {s(sT0)}, {s(sSTEP)}, 1")
    A(f"s_cmp_lt_u32 {s(sT0)}, {nsteps}")
    A(f"s_cbranch_scc0 L_kvok_{lb}")
    A.label(f"L_kvspin_{lb}")
    A("s_mov_b64 exec, 1")
    A(f"global_load_dword {v(vFLG)}, {v(vL16)}, {s(sKF,2)} sc1")
    A("s_mov_b64 exec, -1")
    A(f"s_add_u32 {s(sSPIN)}, {s(sSPIN)}, 1")
    A(f"s_cmp_gt_u32 {s(sSPIN)}, {spin_max}")
    A(f"s_cbranch_scc1 {FAIL}")
    A("s_waitcnt vmcnt(0)")
    A(f"v_readfirstlane_b32 {s(sT3)}, {v(vFLG)}")
    A("s_nop 3")
    A(f"s_cmp_lg_u32 {s(sT3)}, 0")
    A(f"s_cbranch_scc0 L_kvspin_{lb}")
    A(f"s_mov_b32 {s(sSPIN)}, 0")
    A.label(f"L_kvok_{lb}")
    add64(A, sKF, sKF, 128); add64(A, sMF, sMF, 128)
    A("s_waitcnt lgkmcnt(0)")
    T(A, 'adv')
    if slG: A(f"s_sleep {slG}")
    A(f"s_branch L_step_{lb}")
    A.label(f"L_last_{lb}")
    A("s_waitcnt vmcnt(0)")
    A("s_barrier")
    if w == 0:
        add64(A, sMF, sMF, 128)
        A("s_mov_b64 exec, 1")
        A(f"v_mov_b32 {v(vDUM)}, 1")
        A(f"global_store_dword {v(vL16)}, {v(vDUM)}, {s(sMF,2)} sc1")
        A("s_mov_b64 exec, -1")
        A("s_waitcnt vmcnt(0)")
    A(f"s_branch L_{pfx}_done")

def part_bases(A, w):
    A(f"s_and_b32 {s(sT0)}, {s(sSTEP)}, 1")
    A(f"s_lshl_b32 {s(sT0)}, {s(sT0)}, 18")
    A(f"s_add_u32 {s(sPSA)}, {s(sWS)}, {s(sT0)}"); A(f"s_addc_u32 {s(sPSA+1)}, {s(sWS+1)}, 0")
    add64(A, sPSB, sPSA, 32768)
    A(f"s_lshl_b32 {s(sT0)}, {s(sH)}, 13"); A(f"s_add_u32 {s(sT0)}, {s(sT0)}, {w*2048}")
    add64s(A, sPLD, sPSA, sT0)

def chain_init_buffers(A, st):
    A("v_mov_b32 v108, -1"); A("v_mov_b32 v109, -1"); A("v_mov_b32 v110, -1"); A("v_mov_b32 v111, -1")
    A(f"s_lshl_b32 {s(sT0)}, {s(sH)}, 13"); A(f"s_lshl_b32 {s(sT1)}, {s(sW)}, 11"); A(f"s_add_u32 {s(sT0)}, {s(sT0)}, {s(sT1)}")
    A(f"v_add_u32 v106, {s(sT0)}, {v(vL16)}")
    for par in range(2):
        add64(A, sT2, sWS, WS_PART + par*0x40000)
        A(f"global_store_dwordx4 v106, v[108:111], {s(sT2,2)} {st}")
        A(f"global_store_dwordx4 v106, v[108:111], {s(sT2,2)} offset:1024 {st}")
    A(f"s_mov_b64 exec, {s(sMPUB,2)}")
    for sl in range(4):
        add64(A, sT2, sWS, WS_MEM + sl*8192)
        A(f"global_store_dword {v(vMS)}, v108, {s(sT2,2)} {st}")
    A("s_mov_b64 exec, -1")

def chain_state0(A, FAIL):
    A(f"s_mov_b32 {s(sSTEP)}, 0"); A(f"s_mov_b32 {s(sSPIN)}, 0"); A(f"s_mov_b32 {s(sTAG)}, 0")
    A(f"s_mov_b32 {s(sC)}, 0x3e0293ee"); A(f"s_mov_b32 {s(sC+1)}, 0x3e0293ee")
    add64(A, sPUB, sWS, WS_MEM + 8192)
    add64(A, sPOI, sWS, WS_MEM + 3*8192)
    A(f"s_lshl_b32 {s(sT0)}, {s(sW)}, 11"); A(f"s_add_u32 {s(sT0)}, {s(sT0)}, {hex(WS_MEM)}")
    add64s(A, sGAT, sWS, sT0)
    A(f"s_lshl_b32 {s(sT0)}, {s(sH)}, 13"); A(f"s_lshl_b32 {s(sT1)}, {s(sW)}, 11"); A(f"s_add_u32 {s(sT0)}, {s(sT0)}, {s(sT1)}")
    A(f"s_add_u32 {s(sT1)}, {s(sT0)}, {hex(WS_KX)}"); add64s(A, sKX, sWS, sT1)
    A(f"s_add_u32 {s(sT1)}, {s(sT0)}, {hex(WS_VX)}"); add64s(A, sVX, sWS, sT1)
    A(f"s_lshl_b32 {s(sT0)}, {s(sH)}, 11")
    A(f"s_add_u32 {s(sT1)}, {s(sT0)}, {hex(WS_KMEM)}"); add64s(A, sKM, sWS, sT1)
    A(f"s_add_u32 {s(sT1)}, {s(sT0)}, {hex(WS_VMEM)}"); add64s(A, sVM, sWS, sT1)
    A(f"s_lshl_b32 {s(sT0)}, {s(sH)}, 2"); A(f"s_add_u32 {s(sT1)}, {s(sT0)}, {hex(F_KV)}")
    add64s(A, sKF, sWS, sT1)
    for sg in range(2):
        A(f"s_mov_b32 {s(sSPIN)}, 0")
        A.label(f"L_c_kv{sg}")
        A("s_mov_b64 exec, 1")
        A(f"global_load_dword {v(vFLG)}, {v(vL16)}, {s(sKF,2)} sc1")
        A("s_mov_b64 exec, -1")
        A(f"s_add_u32 {s(sSPIN)}, {s(sSPIN)}, 1"); A(f"s_cmp_gt_u32 {s(sSPIN)}, 4000000"); A(f"s_cbranch_scc1 {FAIL}")
        A("s_waitcnt vmcnt(0)")
        A(f"v_readfirstlane_b32 {s(sT3)}, {v(vFLG)}"); A("s_nop 3")
        A(f"s_cmp_lg_u32 {s(sT3)}, 0"); A(f"s_cbranch_scc0 L_c_kv{sg}")
        add64(A, sKF, sKF, 128)
    A(f"s_mov_b32 {s(sSPIN)}, 0")
    A(f"s_lshl_b32 {s(sT0)}, {s(sH)}, 2"); A(f"s_add_u32 {s(sT1)}, {s(sT0)}, {hex(F_MEM - 128)}")
    add64s(A, sMF, sWS, sT1)
    A(f"s_lshl_b32 {s(sT0)}, {s(sW)}, 11"); A(f"s_add_u32 m0, {s(sT0)}, {L_KX}"); A("s_nop 0")
    A(f"global_load_lds_dwordx4 {v(vL16)}, {s(sKX,2)} sc1")
    A(f"global_load_lds_dwordx4 {v(vL16)}, {s(sKX,2)} offset:1024 sc1")
    add64(A, sKX, sKX, 32*8192)
    A("v_and_b32 v104, 15, v100"); A("v_lshrrev_b32 v105, 4, v100")
    A("v_lshrrev_b32 v101, 2, v104"); A("v_lshlrev_b32 v101, 1, v101")
    A("v_and_b32 v102, 1, v104"); A("v_add_u32 v101, v101, v102")
    A("v_lshlrev_b32 v101, 10, v101")
    A("v_bfe_u32 v102, v104, 1, 1"); A("v_lshlrev_b32 v102, 6, v102")
    A("v_lshl_add_u32 v102, v105, 3, v102")
    A("v_add_u32 v101, v101, v102")
    A(f"s_lshl_b32 {s(sT0)}, {s(sW)}, 8")
    A(f"v_add_u32 v101, {s(sT0)}, v101")
    A(f"global_load_dwordx2 v[108:109], v101, {s(sM0,2)}")
    A(f"global_load_dwordx2 v[110:111], v101, {s(sM0,2)} offset:32")
    A(f"global_load_dwordx2 v[112:113], v101, {s(sM0,2)} offset:128")
    A(f"global_load_dwordx2 v[114:115], v101, {s(sM0,2)} offset:160")
    A("s_mov_b32 s56, 0x05040100"); A("s_mov_b32 s57, 0x07060302")
    A("s_waitcnt vmcnt(0)")
    for k, (lo, hi) in enumerate(((108, 110), (112, 114))):
        d = 116 + 4*k
        A(f"v_perm_b32 {v(d)}, {v(hi)}, {v(lo)}, s56")
        A(f"v_perm_b32 {v(d+1)}, {v(hi)}, {v(lo)}, s57")
        A(f"v_perm_b32 {v(d+2)}, {v(hi+1)}, {v(lo+1)}, s56")
        A(f"v_perm_b32 {v(d+3)}, {v(hi+1)}, {v(lo+1)}, s57")
    A("s_barrier")

def chain_start(A, w, pfx):
    t0, t1 = own_t(w)
    part_bases(A, w)
    for i in range(4):
        A(f"v_mov_b32 {v(vMA+4*t0+i)}, {v(116+i)}")
        A(f"v_mov_b32 {v(vMA+4*t1+i)}, {v(120+i)}")
    stage_own(A, w)
    zero_regs(A, 56, 24)
    A("s_waitcnt lgkmcnt(0)")
    A(f"s_branch L_entry_{pfx}W{w}")
```

```python
from asmlib import *

WS_PART  = 0x0
WS_MEM   = 0x80000
WS_FLAG  = 0xA0000
F_KV     = WS_FLAG + 0x0000
F_MEM    = WS_FLAG + 0x2100
F_H      = WS_FLAG + 0x4800
FLAG_BYTES = 0x8000
WS_KX    = 0x1000000
WS_VX    = 0x2000000
WS_KMEM  = 0x3000000
WS_VMEM  = 0x3400000
WS_XN    = 0x3800000
WS_XT    = 0x4000000
XT_STRIDE = 0x400000

def add64(A, dst, src, imm):
    A(f"s_add_u32 {s(dst)}, {s(src)}, {hex(imm)}")
    A(f"s_addc_u32 {s(dst+1)}, {s(src+1)}, 0")
def add64s(A, dst, src, sreg):
    A(f"s_add_u32 {s(dst)}, {s(src)}, {s(sreg)}")
    A(f"s_addc_u32 {s(dst+1)}, {s(src+1)}, 0")
def zero_regs(A, b, n):
    for i in range(0, n, 2): A(f"v_mov_b64 {v(b+i,2)}, 0")
def rstr(h, off=0, n=4):
    k, b = h
    return (a if k == 'a' else v)(b + off, n)

def ring_loader(A, chunks, nslots, look, issue_fn, consume_fn, slot_of=None, issue_at=None, nper=4):
    n = len(chunks)
    slot_of = slot_of or (lambda c: c % nslots)
    issue_at = issue_at or {c: c - look for c in range(look, n)}
    issued = []
    def iss(c): issue_fn(c, slot_of(c)); issued.append(c)
    for c in range(min(look, n)): iss(c)
    for c in range(n):
        after = len(issued) - 1 - issued.index(c)
        A(f"s_waitcnt vmcnt({nper*after})")
        A("s_barrier")
        for c2, at in issue_at.items():
            if at == c: iss(c2)
        consume_fn(c, slot_of(c))
        A("s_waitcnt lgkmcnt(0)")
    A("s_barrier")

def xor_swap_reduce(A, reg, tmp, op):
    A(f"v_mov_b32 {v(tmp)}, {v(reg)}")
    A("s_nop 1")
    A(f"v_permlane32_swap_b32 {v(reg)}, {v(tmp)}")
    A(f"{op} {v(reg)}, {v(reg)}, {v(tmp)}")
    A(f"v_mov_b32 {v(tmp)}, {v(reg)}")
    A("s_nop 1")
    A(f"v_permlane16_swap_b32 {v(reg)}, {v(tmp)}")
    A(f"{op} {v(reg)}, {v(reg)}, {v(tmp)}")
```

```python
from common import *

sX, sWK, sWV, sWS, sDBG = 4, 6, 8, 14, 16
sH, sW = 18, 19
sT0, sT1, sT2, sT3 = 52, 53, 54, 55

def ln_tile(A, sTILE, lbl, st='sc1'):
    XR = 8
    F = 72
    A(f"v_and_b32 v1, 15, v0")
    A(f"v_lshrrev_b32 v2, 4, v0")
    A(f"s_lshl_b32 {s(sT0)}, {s(sTILE)}, 14")
    A(f"v_lshlrev_b32 v3, 10, v1")
    A(f"v_lshl_add_u32 v3, v2, 4, v3")
    A(f"v_add_u32 v3, {s(sT0)}, v3")
    for ks in range(16):
        A(f"global_load_dwordx4 {v(XR+4*ks,4)}, v3, {s(sX,2)} offset:{ks*64}")
    A(f"v_mov_b32 v4, 0"); A(f"v_mov_b32 v5, 0")
    A(f"s_mov_b32 {s(sT1)}, 0xffff0000")
    A("s_waitcnt vmcnt(0)")
    for i in range(64):
        A(f"v_lshlrev_b32 {v(F)}, 16, {v(XR+i)}")
        A(f"v_and_b32 {v(F+1)}, {s(sT1)}, {v(XR+i)}")
        A(f"v_add_f32 v4, v4, {v(F)}")
        A(f"v_add_f32 v5, v5, {v(F+1)}")
    A("v_add_f32 v4, v4, v5")
    xor_swap_reduce(A, 4, 5, 'v_add_f32')
    A("v_mul_f32 v4, 0x3b000000, v4")
    A("v_mov_b32 v5, 0"); A("v_mov_b32 v6, 0")
    for i in range(64):
        A(f"v_lshlrev_b32 {v(F)}, 16, {v(XR+i)}")
        A(f"v_and_b32 {v(F+1)}, {s(sT1)}, {v(XR+i)}")
        A(f"v_sub_f32 {v(F)}, {v(F)}, v4")
        A(f"v_sub_f32 {v(F+1)}, {v(F+1)}, v4")
        A(f"v_fmac_f32 v5, {v(F)}, {v(F)}")
        A(f"v_fmac_f32 v6, {v(F+1)}, {v(F+1)}")
    A("v_add_f32 v5, v5, v6")
    xor_swap_reduce(A, 5, 6, 'v_add_f32')
    A("v_mov_b32 v6, 0x3727c5ac")
    A("v_fmac_f32 v6, 0x3b000000, v5")
    A("v_rsq_f32 v5, v6")
    A(f"s_lshl_b32 {s(sT0)}, {s(sTILE)}, 14")
    A(f"s_add_u32 {s(sT0)}, {s(sT0)}, {hex(WS_XN)}")
    add64s(A, sT2, sWS, sT0)
    A("v_lshlrev_b32 v3, 4, v0")
    for ks in range(16):
        for d in range(4):
            r = XR + 4*ks + d
            A(f"v_lshlrev_b32 {v(F)}, 16, {v(r)}")
            A(f"v_and_b32 {v(F+1)}, {s(sT1)}, {v(r)}")
            A(f"v_sub_f32 {v(F)}, {v(F)}, v4")
            A(f"v_sub_f32 {v(F+1)}, {v(F+1)}, v4")
            A(f"v_mul_f32 {v(F)}, {v(F)}, v5")
            A(f"v_mul_f32 {v(F+1)}, {v(F+1)}, v5")
            A(f"v_cvt_pk_bf16_f32 {v(r)}, {v(F)}, {v(F+1)}")
        if ks % 4 == 0 and ks > 0:
            A(f"v_add_u32 v3, 4096, v3")
        A(f"global_store_dwordx4 v3, {v(XR+4*ks,4)}, {s(sT2,2)} offset:{(ks%4)*1024} {st}")
    A("s_waitcnt vmcnt(0)")

def wload_addresses(A, vD0, vD1, vT0, vT1, rowstride_log2, colbase_sreg, lane=100):
    t1, t2, t3 = 101, 102, 103
    A(f"v_lshrrev_b32 {v(t1)}, 4, {v(lane)}")
    A(f"v_lshlrev_b32 {v(t2)}, 1, {v(t1)}")
    A(f"v_and_b32 {v(t3)}, 15, {v(lane)}")
    A(f"v_xor_b32 {v(t2)}, {v(t2)}, {v(t3)}")
    A(f"s_lshl_b32 {s(sT0)}, {s(sW)}, 4")
    A(f"v_add_u32 {v(t1)}, {s(sT0)}, {v(t1)}")
    A(f"v_lshlrev_b32 {v(t1)}, {rowstride_log2}, {v(t1)}")
    A(f"v_add_u32 {v(t1)}, {s(colbase_sreg)}, {v(t1)}")
    A(f"v_lshl_add_u32 {v(vD0)}, {v(t2)}, 4, {v(t1)}")
    A(f"v_xor_b32 {v(t2)}, 8, {v(t2)}")
    A(f"v_lshl_add_u32 {v(vD1)}, {v(t2)}, 4, {v(t1)}")
    A(f"v_lshrrev_b32 {v(t1)}, 4, {v(lane)}")
    A(f"v_bfe_u32 {v(t2)}, {v(lane)}, 2, 2")
    A(f"v_lshl_add_u32 {v(t3)}, {v(t1)}, 3, {v(t2)}")
    A(f"v_lshlrev_b32 {v(t3)}, 8, {v(t3)}")
    A(f"v_and_b32 {v(t1)}, 1, {v(t1)}")
    A(f"v_lshlrev_b32 {v(t1)}, 3, {v(t1)}")
    A(f"v_lshl_add_u32 {v(t1)}, {v(t2)}, 1, {v(t1)}")
    A(f"v_bfe_u32 {v(t2)}, {v(lane)}, 1, 1")
    A(f"s_lshl_b32 {s(sT0)}, {s(sW)}, 2")
    A(f"v_or_b32 {v(t2)}, {s(sT0)}, {v(t2)}")
    A(f"v_xor_b32 {v(t1)}, {v(t1)}, {v(t2)}")
    A(f"v_lshl_add_u32 {v(t3)}, {v(t1)}, 4, {v(t3)}")
    A(f"v_and_b32 {v(t1)}, 1, {v(lane)}")
    A(f"v_lshl_add_u32 {v(vT0)}, {v(t1)}, 3, {v(t3)}")
    A(f"v_xor_b32 {v(vT1)}, 32, {v(vT0)}")

KV_vL16, KV_vD0, KV_vD1, KV_vT0, KV_vT1, KV_vT0h, KV_vT1h = 1, 2, 3, 4, 5, 6, 7
KV_XF = 8
KV_AK, KV_AV = 16, 32
KV_O = 48
KV_XF2 = 72
def kv_home(m, P, ks): return ('a', (0 if m == 'K' else 128) + 64*P + 4*ks)
L_XN0, L_XN1 = 0, 32768

def kv_load_weights(A):
    A(f"s_lshl_b32 {s(sT1)}, {s(sH)}, 8")
    A("v_mov_b32 v100, v0")
    wload_addresses(A, KV_vD0, KV_vD1, KV_vT0, KV_vT1, 13, sT1)
    A(f"v_add_u32 {v(KV_vT0h)}, 0x10000, {v(KV_vT0)}")
    A(f"v_add_u32 {v(KV_vT1h)}, 0x10000, {v(KV_vT1)}")
    chunks = [(m, c) for m in 'KV' for c in range(8)]
    def issue(c, slot):
        m, x = chunks[c]
        for i in range(4):
            add64(A, sT2, sWK if m == 'K' else sWV, (64*x + 4*i)*8192)
            A(f"s_lshl_b32 {s(sT0)}, {s(sW)}, 12")
            A(f"s_add_u32 m0, {s(sT0)}, {slot*16384 + i*1024}")
            A("s_nop 0")
            A(f"global_load_lds_dwordx4 {v(KV_vD0 if i < 2 else KV_vD1)}, {s(sT2,2)}")
    def consume(c, slot):
        m, x = chunks[c]
        for P in range(2):
            base = [[KV_vT0, KV_vT0h], [KV_vT1, KV_vT1h]][P][slot >> 2]
            for k2 in range(2):
                ks = 2*x + k2
                for hh in range(2):
                    off = (slot & 3)*16384 + (32*k2 + 4*hh)*256
                    A(f"ds_read_b64_tr_b16 {rstr(kv_home(m, P, ks), 2*hh, 2)}, {v(base)} offset:{off}")
    ring_loader(A, chunks, 8, 7, issue, consume)

def kv_loop(A, sSEG, sSTRIDE_segs, nseg_total, st='sc1', lbl='KV'):
    sXB, sKO, sVO, sFL, sPREV, sBUF = 22, 24, 26, 28, 30, 31
    A(f"v_lshlrev_b32 {v(KV_vL16)}, 4, v0")
    def dma(sbase, bufreg):
        for i in range(8):
            if i % 4 == 0:
                A(f"s_lshl_b32 {s(sT0)}, {s(sW)}, 13")
                A(f"s_add_u32 {s(sT0)}, {s(sT0)}, {i*1024}")
                A(f"s_add_u32 m0, {s(sT0)}, {s(bufreg)}")
                add64s(A, sT2, sbase, sT0)
            A(f"global_load_lds_dwordx4 {v(KV_vL16)}, {s(sT2,2)} offset:{(i%4)*1024} sc1")
    def xn_base(dst, sseg):
        A(f"s_lshl_b32 {s(sT0)}, {s(sseg)}, 15")
        A(f"s_add_u32 {s(sT0)}, {s(sT0)}, {hex(WS_XN)}")
        add64s(A, dst, sWS, sT0)
    A(f"s_mov_b32 {s(sBUF)}, 0")
    A(f"s_mov_b32 {s(sPREV)}, -1")
    xn_base(sXB, sSEG)
    dma(sXB, sBUF)
    A.label(f"L_{lbl}_loop")
    A(f"s_cmp_eq_u32 {s(sPREV)}, -1")
    A(f"s_cbranch_scc1 L_{lbl}_w0")
    A("s_waitcnt vmcnt(4)")
    A(f"s_branch L_{lbl}_w1")
    A.label(f"L_{lbl}_w0")
    A("s_waitcnt vmcnt(0)")
    A.label(f"L_{lbl}_w1")
    A("s_barrier")
    A(f"s_add_u32 {s(sT3)}, {s(sSEG)}, {sSTRIDE_segs}")
    A(f"s_cmp_lt_u32 {s(sT3)}, {nseg_total}")
    A(f"s_cbranch_scc1 L_{lbl}_dodma")
    A("s_waitcnt vmcnt(0)")
    A(f"s_branch L_{lbl}_nodma")
    A.label(f"L_{lbl}_dodma")
    A(f"s_mov_b32 s32, {s(sT3)}")
    xn_base(sXB, 32)
    A(f"s_xor_b32 s33, {s(sBUF)}, 32768")
    dma(sXB, 33)
    A.label(f"L_{lbl}_nodma")
    A(f"v_add_u32 v64, {s(sBUF)}, {v(KV_vL16)}")
    seq = [(U, ks) for U in range(2) for ks in range(16)]
    NB = 4
    def rd(i):
        U, ks = seq[i]
        A(f"ds_read_b128 {v(KV_XF2+4*(i%NB),4)}, v64 offset:{U*16384 + ks*1024}")
    for i in range(3): rd(i)
    for i, (U, ks) in enumerate(seq):
        if i + 3 < len(seq): rd(i+3)
        A(f"s_waitcnt lgkmcnt({min(3, len(seq)-1-i)})")
        x = v(KV_XF2+4*(i%NB),4)
        for P in range(2):
            d = KV_AK + 8*P + 4*U
            A(f"v_mfma_f32_16x16x32_bf16 {v(d,4)}, {rstr(kv_home('K',P,ks))}, {x}, {'0' if ks == 0 else v(d,4)}")
        for P in range(2):
            d = KV_AV + 8*P + 4*U
            A(f"v_mfma_f32_16x16x32_bf16 {v(d,4)}, {x}, {rstr(kv_home('V',P,ks))}, {'0' if ks == 0 else v(d,4)}")
    A("s_nop 7")
    for U in range(2):
        for r in range(4):
            A(f"v_cvt_pk_bf16_f32 {v(KV_O+4*U+r)}, {v(KV_AK+4*U+r)}, {v(KV_AK+8+4*U+r)}")
    for P in range(2):
        b = KV_AV + 8*P
        A(f"v_cvt_pk_bf16_f32 {v(KV_O+8+4*P)}, {v(b)}, {v(b+1)}")
        A(f"v_cvt_pk_bf16_f32 {v(KV_O+8+4*P+1)}, {v(b+2)}, {v(b+3)}")
        A(f"v_cvt_pk_bf16_f32 {v(KV_O+8+4*P+2)}, {v(b+4)}, {v(b+5)}")
        A(f"v_cvt_pk_bf16_f32 {v(KV_O+8+4*P+3)}, {v(b+6)}, {v(b+7)}")
    A("s_waitcnt vmcnt(8)")
    A("s_barrier")
    A(f"s_cmp_eq_u32 {s(sPREV)}, -1")
    A(f"s_cbranch_scc1 L_{lbl}_noflag")
    kv_flag(A, sPREV, lbl + 'a', st)
    A.label(f"L_{lbl}_noflag")
    A(f"s_lshl_b32 {s(sT0)}, {s(sSEG)}, 5"); A(f"s_add_u32 {s(sT0)}, {s(sT0)}, {s(sH)}"); A(f"s_lshl_b32 {s(sT0)}, {s(sT0)}, 13")
    A(f"s_lshl_b32 {s(sT1)}, {s(sW)}, 10"); A(f"s_add_u32 {s(sT1)}, {s(sT1)}, {s(sT0)}"); A(f"s_add_u32 {s(sT1)}, {s(sT1)}, {hex(WS_KX)}")
    add64s(A, sKO, sWS, sT1)
    A(f"s_lshl_b32 {s(sT1)}, {s(sW)}, 11"); A(f"s_add_u32 {s(sT1)}, {s(sT1)}, {s(sT0)}"); A(f"s_add_u32 {s(sT1)}, {s(sT1)}, {hex(WS_VX)}")
    add64s(A, sVO, sWS, sT1)
    A(f"global_store_dwordx4 {v(KV_vL16)}, {v(KV_O,4)}, {s(sKO,2)} {st}")
    add64(A, sKO, sKO, 4096)
    A(f"global_store_dwordx4 {v(KV_vL16)}, {v(KV_O+4,4)}, {s(sKO,2)} {st}")
    A(f"global_store_dwordx4 {v(KV_vL16)}, {v(KV_O+8,4)}, {s(sVO,2)} {st}")
    A(f"global_store_dwordx4 {v(KV_vL16)}, {v(KV_O+12,4)}, {s(sVO,2)} offset:1024 {st}")
    A(f"s_mov_b32 {s(sPREV)}, {s(sSEG)}")
    A(f"s_xor_b32 {s(sBUF)}, {s(sBUF)}, 32768")
    A(f"s_add_u32 {s(sSEG)}, {s(sSEG)}, {sSTRIDE_segs}")
    A(f"s_cmp_lt_u32 {s(sSEG)}, {nseg_total}")
    A(f"s_cbranch_scc1 L_{lbl}_loop")
    A("s_waitcnt vmcnt(0)")
    A("s_barrier")
    kv_flag(A, sPREV, lbl + 'b', st)

def kv_flag(A, sseg, lbl, st):
    A(f"s_cmp_eq_u32 {s(sW)}, 0")
    A(f"s_cbranch_scc0 L_{lbl}_fl_skip")
    A(f"s_lshl_b32 {s(sT0)}, {s(sseg)}, 5"); A(f"s_add_u32 {s(sT0)}, {s(sT0)}, {s(sH)}"); A(f"s_lshl_b32 {s(sT0)}, {s(sT0)}, 2")
    A(f"s_add_u32 {s(sT0)}, {s(sT0)}, {hex(F_KV)}")
    A(f"v_mov_b32 v66, {s(sT0)}")
    A(f"v_mov_b32 v67, 1")
    A(f"s_mov_b64 exec, 1")
    A(f"global_store_dword v66, v67, {s(sWS,2)} sc1")
    A(f"s_mov_b64 exec, -1")
    A.label(f"L_{lbl}_fl_skip")
```

```python
from common import *
def preamble(A, sW, nwg=256):
    A(f"s_cmp_ge_u32 s2, {nwg}")
    A("s_cbranch_scc1 L_exit0")
    A("v_lshrrev_b32 v1, 6, v0")
    A("v_and_b32 v0, 63, v0")
    A("s_nop 0")
    A(f"v_readfirstlane_b32 {s(sW)}, v1")
def ticket(A, sW, sDBG, sXCC, sOUT, lds_scratch, lbl='T'):
    A(f"s_cmp_eq_u32 {s(sW)}, 0")
    A(f"s_cbranch_scc0 L_{lbl}_tick")
    A(f"s_lshl_b32 s56, {s(sXCC)}, 2")
    A("v_mov_b32 v1, s56"); A("v_mov_b32 v2, 1")
    A("s_mov_b64 exec, 1")
    A(f"global_atomic_add v3, v1, v2, {s(sDBG,2)} sc0")
    A("s_waitcnt vmcnt(0)")
    A(f"v_mov_b32 v4, {lds_scratch}")
    A("ds_write_b32 v4, v3")
    A("s_waitcnt lgkmcnt(0)")
    A("s_mov_b64 exec, -1")
    A.label(f"L_{lbl}_tick")
    A("s_barrier")
    A(f"v_mov_b32 v4, {lds_scratch}")
    A("ds_read_b32 v3, v4")
    A("s_waitcnt lgkmcnt(0)")
    A(f"v_readfirstlane_b32 {s(sOUT)}, v3")
    A("s_nop 3")
    A("s_barrier")
def arrive(A, sW, sDBG, off, lbl):
    A("s_waitcnt vmcnt(0)")
    A("s_barrier")
    A(f"s_cmp_eq_u32 {s(sW)}, 0")
    A(f"s_cbranch_scc0 L_{lbl}_arr")
    A(f"v_mov_b32 v1, {off}"); A("v_mov_b32 v2, 1")
    A("s_mov_b64 exec, 1")
    A(f"global_atomic_add v1, v2, {s(sDBG,2)}")
    A("s_mov_b64 exec, -1")
    A.label(f"L_{lbl}_arr")
def wait_counter(A, sBASE, off, target, lbl, vt=1, spin=56, maxspin=4000000, fail='L_fail'):
    A(f"s_mov_b32 {s(spin)}, 0")
    A(f"v_mov_b32 {v(vt)}, {off}")
    A.label(f"L_{lbl}_wait")
    A(f"global_load_dword {v(vt+1)}, {v(vt)}, {s(sBASE,2)} sc1")
    A(f"s_add_u32 {s(spin)}, {s(spin)}, 1")
    A(f"s_cmp_gt_u32 {s(spin)}, {maxspin}")
    A(f"s_cbranch_scc1 {fail}")
    A("s_waitcnt vmcnt(0)")
    A(f"v_readfirstlane_b32 s57, {v(vt+1)}")
    A("s_nop 3")
    A(f"s_cmp_ge_u32 s57, {target}")
    A(f"s_cbranch_scc0 L_{lbl}_wait")
KD_TMPL = """.section .rodata,"a"
.p2align 6
.amdhsa_kernel {name}
  .amdhsa_next_free_vgpr 512
  .amdhsa_next_free_sgpr 102
  .amdhsa_accum_offset 256
  .amdhsa_group_segment_fixed_size 0
  .amdhsa_kernarg_size 112
  .amdhsa_user_sgpr_count 2
  .amdhsa_user_sgpr_kernarg_segment_ptr 1
  .amdhsa_system_sgpr_workgroup_id_x 1
.end_amdhsa_kernel"""
```

```python
from common import *
import kv

sX, sWQ, sWO, sWG, sWU, sWD, sOUT, sWS, sDBG = 4, 6, 8, 10, 12, 20, 22, 14, 16
sH, sW = 18, 19
sSEG, sIT, sTB, sTAG, sSPIN, sC = 24, 25, 26, 28, 29, 30
sA0, sA1, sA2, sA3 = 32, 34, 36, 38
sMLO32 = 40
sTEAM = 42
sT0, sT1, sT2, sT3 = 52, 53, 54, 55

L_XA, L_XB, L_KX, L_VX, L_Q, L_O, L_HF, L_ST, L_WD = 0, 32768, 65536, 73728, 81920, 90112, 98304, 101376, 114688
XT_PART0, XT_PART1, XT_H = 0x0, 0x100000, 0x200000

vL16, vKK, vVM, vPS, vPL, vXR, vHP, vOUTA, vWDA, vT = 1, 2, 3, 4, 5, 6, 7, 8, 9, 10
vM1, vM2, vONE, vSEL, vCSG, vCSU, vHR, vXV = 16, 20, 24, 28, 32, 36, 40, 44
B = 48
def wq_home(P, ks): return ('a', 64*P + 4*ks)
def wo_home(T, k): return ('a', 128 + 16*T + 4*k)
def wg_home(ks): return ('v', 128 + 4*ks)
def wu_home(ks): return ('v', 192 + 4*ks)

def x_addresses(A):
    L, t1, t2, t3, n_, kq_ = 0, 101, 102, 103, 104, 105
    A(f"v_and_b32 {v(n_)}, 15, v0"); A(f"v_lshrrev_b32 {v(kq_)}, 4, v0")
    A(f"v_lshlrev_b32 {v(vL16)}, 4, v0")
    A(f"v_lshrrev_b32 {v(t1)}, 2, {v(n_)}"); A(f"v_lshlrev_b32 {v(t1)}, 1, {v(t1)}")
    A(f"v_and_b32 {v(t2)}, 1, {v(n_)}"); A(f"v_add_u32 {v(t1)}, {v(t1)}, {v(t2)}")
    A(f"v_lshlrev_b32 {v(t1)}, 4, {v(t1)}")
    A(f"v_lshl_add_u32 {v(vKK)}, {v(kq_)}, 7, {v(t1)}")
    A(f"s_and_b32 {s(sT0)}, {s(sW)}, 1"); A(f"s_lshl_b32 {s(sT0)}, {s(sT0)}, 10")
    A(f"v_lshlrev_b32 {v(t1)}, 2, v0"); A(f"v_add_u32 {v(vVM)}, {s(sT0)}, {v(t1)}")
    A(f"s_lshl_b32 {s(sT0)}, {s(sW)}, 18"); A(f"s_lshl_b32 {s(sT1)}, {s(sH)}, 10"); A(f"s_add_u32 {s(sT0)}, {s(sT0)}, {s(sT1)}")
    A(f"v_add_u32 {v(vPS)}, {s(sT0)}, {v(vL16)}")
    A(f"s_lshl_b32 {s(sT0)}, {s(sH)}, 15"); A(f"s_lshl_b32 {s(sT1)}, {s(sW)}, 8"); A(f"s_add_u32 {s(sT0)}, {s(sT0)}, {s(sT1)}")
    A(f"v_lshlrev_b32 {v(t1)}, 10, {v(kq_)}"); A(f"v_lshl_add_u32 {v(t1)}, {v(n_)}, 4, {v(t1)}")
    A(f"v_add_u32 {v(vPL)}, {s(sT0)}, {v(t1)}")
    A(f"v_and_b32 {v(t1)}, 31, v0"); A(f"v_lshlrev_b32 {v(t1)}, 10, {v(t1)}")
    A(f"s_lshl_b32 {s(sT0)}, {s(sH)}, 5"); A(f"s_lshl_b32 {s(sT1)}, {s(sW)}, 3"); A(f"s_add_u32 {s(sT0)}, {s(sT0)}, {s(sT1)}")
    A(f"v_add_u32 {v(vXR)}, {s(sT0)}, {v(t1)}")
    A(f"v_and_b32 {v(t1)}, 1, {v(kq_)}"); A(f"v_lshlrev_b32 {v(t1)}, 14, {v(t1)}")
    A(f"v_lshl_add_u32 {v(t1)}, {v(n_)}, 4, {v(t1)}")
    A(f"s_lshr_b32 {s(sT0)}, {s(sH)}, 1"); A(f"s_lshl_b32 {s(sT0)}, {s(sT0)}, 10")
    A(f"s_lshl_b32 {s(sT1)}, {s(sW)}, 8"); A(f"s_add_u32 {s(sT0)}, {s(sT0)}, {s(sT1)}")
    A(f"s_and_b32 {s(sT1)}, {s(sH)}, 1"); A(f"s_lshl_b32 {s(sT1)}, {s(sT1)}, 3"); A(f"s_add_u32 {s(sT0)}, {s(sT0)}, {s(sT1)}")
    A(f"v_add_u32 {v(vHP)}, {s(sT0)}, {v(t1)}")
    A(f"s_mul_i32 {s(sT0)}, {s(sW)}, 12288"); A(f"s_add_u32 {s(sT0)}, {s(sT0)}, {L_WD}")
    A(f"v_add_u32 {v(vWDA)}, {s(sT0)}, {v(vL16)}")
    A(f"v_lshlrev_b32 {v(t1)}, 2, {v(kq_)}")
    A(f"v_mov_b32 {v(t3)}, 0xf149f2ca")
    for r in range(4):
        A(f"v_add_u32 {v(t2)}, {r}, {v(t1)}")
        A(f"v_cmp_gt_u32 vcc, {v(t2)}, {v(n_)}")
        A("s_nop 1")
        A(f"v_cndmask_b32 {v(vM1+r)}, 0, {v(t3)}, vcc")
    A(f"s_cmp_lt_u32 {s(sW)}, 2")
    A("s_cbranch_scc1 L_x_mU0")
    for r in range(4):
        A(f"v_mov_b32 {v(vM2+r)}, {v(vM1+r)}"); A(f"v_mov_b32 {v(vM1+r)}, 0")
    A("s_branch L_x_mdone")
    A.label("L_x_mU0")
    for r in range(4): A(f"v_mov_b32 {v(vM2+r)}, {v(t3)}")
    A.label("L_x_mdone")
    A(f"v_and_b32 {v(t2)}, 7, {v(n_)}")
    for jj in range(4):
        A(f"v_mov_b32 {v(vSEL+jj)}, 0")
        A(f"v_mov_b32 {v(t3)}, 0x3f80")
        A(f"v_cmp_eq_u32 vcc, {2*jj}, {v(t2)}"); A("s_nop 1")
        A(f"v_cndmask_b32 {v(vSEL+jj)}, {v(vSEL+jj)}, {v(t3)}, vcc")
        A(f"v_mov_b32 {v(t3)}, 0x3f800000")
        A(f"v_cmp_eq_u32 vcc, {2*jj+1}, {v(t2)}"); A("s_nop 1")
        A(f"v_cndmask_b32 {v(vSEL+jj)}, {v(vSEL+jj)}, {v(t3)}, vcc")
        A(f"v_mov_b32 {v(vONE+jj)}, 0x3f803f80")
    A(f"s_mov_b32 {s(sMLO32)}, -1"); A(f"s_mov_b32 {s(sMLO32+1)}, 0")
    A(f"s_mov_b32 {s(sC)}, 0x3e0293ee"); A(f"s_mov_b32 {s(sC+1)}, 0x3e0293ee")

def x_load_weights(A):
    A("v_mov_b32 v100, v0")
    D0, D1, T0_, T1_, T0h, T1h = 106, 107, 108, 109, 110, 111
    A(f"s_lshl_b32 {s(sT1)}, {s(sH)}, 8")
    kv.wload_addresses(A, D0, D1, T0_, T1_, 13, sT1)
    A(f"v_add_u32 {v(T0h)}, 0x10000, {v(T0_)}"); A(f"v_add_u32 {v(T1h)}, 0x10000, {v(T1_)}")
    E0, E1, U0, U1, U0h, U1h = 112, 113, 114, 115, 116, 117
    t1, t2, t3 = 101, 102, 103
    for (dst, x4) in ((E0, 0), (E1, 8)):
        A(f"v_lshrrev_b32 {v(t1)}, 4, v100"); A(f"v_lshlrev_b32 {v(t2)}, 1, {v(t1)}")
        A(f"v_or_b32 {v(t2)}, {x4}, {v(t2)}")
        A(f"v_and_b32 {v(t3)}, 15, v100"); A(f"v_xor_b32 {v(t2)}, {v(t2)}, {v(t3)}")
        A(f"v_lshrrev_b32 {v(t3)}, 2, {v(t2)}"); A(f"v_lshlrev_b32 {v(t3)}, 8, {v(t3)}")
        A(f"v_and_b32 {v(t2)}, 3, {v(t2)}"); A(f"v_lshl_add_u32 {v(t3)}, {v(t2)}, 4, {v(t3)}")
        A(f"s_lshl_b32 {s(sT0)}, {s(sW)}, 4"); A(f"v_add_u32 {v(t1)}, {s(sT0)}, {v(t1)}")
        A(f"v_lshlrev_b32 {v(t1)}, 10, {v(t1)}")
        A(f"s_lshl_b32 {s(sT0)}, {s(sH)}, 17")
        A(f"v_add3_u32 {v(dst)}, {v(t1)}, {v(t3)}, {s(sT0)}")
    A(f"v_lshrrev_b32 {v(t1)}, 4, v100"); A(f"v_bfe_u32 {v(t2)}, v100, 2, 2")
    A(f"v_lshl_add_u32 {v(t1)}, {v(t1)}, 2, {v(t2)}")
    A(f"v_and_b32 {v(t2)}, 7, {v(t1)}"); A(f"v_lshlrev_b32 {v(t2)}, 1, {v(t2)}")
    A(f"v_bfe_u32 {v(t3)}, v100, 1, 1"); A(f"s_lshl_b32 {s(sT0)}, {s(sW)}, 2"); A(f"v_or_b32 {v(t3)}, {s(sT0)}, {v(t3)}")
    A(f"v_xor_b32 {v(t2)}, {v(t2)}, {v(t3)}")
    A(f"v_lshlrev_b32 {v(t1)}, 8, {v(t1)}"); A(f"v_lshl_add_u32 {v(t1)}, {v(t2)}, 4, {v(t1)}")
    A(f"v_and_b32 {v(t3)}, 1, v100"); A(f"v_lshl_add_u32 {v(U0)}, {v(t3)}, 3, {v(t1)}")
    A(f"v_xor_b32 {v(U1)}, 32, {v(U0)}")
    A(f"v_add_u32 {v(U0h)}, 0x10000, {v(U0)}"); A(f"v_add_u32 {v(U1h)}, 0x10000, {v(U1)}")
    G0 = 118
    A(f"v_and_b32 {v(t1)}, 7, v100"); A(f"v_min_u32 {v(t1)}, 5, {v(t1)}"); A(f"v_lshlrev_b32 {v(t1)}, 3, {v(t1)}")
    A(f"s_mul_i32 {s(sT0)}, {s(sH)}, 48"); A(f"v_add_u32 {v(t1)}, {s(sT0)}, {v(t1)}")
    A(f"v_min_u32 {v(t1)}, 1368, {v(t1)}"); A(f"v_lshlrev_b32 {v(t1)}, 1, {v(t1)}")
    A(f"v_lshrrev_b32 {v(t2)}, 3, v100"); A(f"s_mov_b32 {s(sT0)}, 2752"); A(f"v_mul_lo_u32 {v(t2)}, {v(t2)}, {s(sT0)}")
    A(f"v_add_u32 {v(G0)}, {v(t1)}, {v(t2)}")
    GT = 119
    A(f"v_lshrrev_b32 {v(t1)}, 4, v100"); A(f"v_bfe_u32 {v(t2)}, v100, 2, 2")
    A(f"v_lshl_add_u32 {v(t1)}, {v(t1)}, 2, {v(t2)}"); A(f"v_lshlrev_b32 {v(t1)}, 7, {v(t1)}")
    A(f"v_bfe_u32 {v(t2)}, v100, 1, 1"); A(f"s_min_u32 {s(sT0)}, {s(sW)}, 2"); A(f"s_lshl_b32 {s(sT0)}, {s(sT0)}, 1")
    A(f"v_add_u32 {v(t2)}, {s(sT0)}, {v(t2)}"); A(f"v_lshl_add_u32 {v(t1)}, {v(t2)}, 4, {v(t1)}")
    A(f"v_and_b32 {v(t2)}, 1, v100"); A(f"v_lshl_add_u32 {v(GT)}, {v(t2)}, 3, {v(t1)}")
    GTh = 120
    A(f"v_add_u32 {v(GTh)}, 0x10000, {v(GT)}")
    DT, DTh = 121, 122
    A(f"v_lshrrev_b32 {v(t1)}, 4, v100"); A(f"v_bfe_u32 {v(t2)}, v100, 2, 2")
    A(f"v_lshl_add_u32 {v(t1)}, {v(t1)}, 2, {v(t2)}"); A(f"v_lshlrev_b32 {v(t1)}, 10, {v(t1)}")
    A(f"v_and_b32 {v(t2)}, 3, v100"); A(f"v_lshl_add_u32 {v(t1)}, {v(t2)}, 3, {v(t1)}")
    A(f"s_lshl_b32 {s(sT0)}, {s(sW)}, 8"); A(f"v_add_u32 {v(DT)}, {s(sT0)}, {v(t1)}")
    A(f"v_add_u32 {v(DTh)}, 0x10000, {v(DT)}")
    A(f"v_lshlrev_b32 v123, 4, v100")
    chunks = [('Q', c) for c in range(8)] + [('O', (kp, Tp)) for kp in range(2) for Tp in range(4)] + \
             [(m, c) for m in 'GU' for c in range(4)] + [('D', t) for t in range(3)]
    def issue(c, slot):
        m, x = chunks[c]
        for i in range(4):
            if m == 'Q': add64(A, sT2, sWQ, (64*x + 4*i)*8192); va = D0 if i < 2 else D1
            elif m == 'O': add64(A, sT2, sWO, (64*x[0] + 4*i)*1024 + 64*x[1]); va = E0 if i % 2 == 0 else E1
            elif m in 'GU':
                A(f"s_mul_i32 {s(sT0)}, {s(sW)}, {32*2752}"); A(f"s_add_u32 {s(sT0)}, {s(sT0)}, {(128*x + 8*i)*2752}")
                add64s(A, sT2, sWG if m == 'G' else sWU, sT0); va = G0
            else:
                A(f"s_mul_i32 {s(sT0)}, {s(sH)}, 48"); A(f"s_lshl_b32 {s(sT1)}, {s(sW)}, 2"); A(f"s_add_u32 {s(sT0)}, {s(sT0)}, {s(sT1)}")
                A(f"s_add_u32 {s(sT0)}, {s(sT0)}, {16*x + i}"); A(f"s_min_u32 {s(sT0)}, {s(sT0)}, 1375"); A(f"s_lshl_b32 {s(sT0)}, {s(sT0)}, 10")
                add64s(A, sT2, sWD, sT0); va = 123
            A(f"s_lshl_b32 {s(sT0)}, {s(sW)}, 12")
            A(f"s_add_u32 m0, {s(sT0)}, {slot*16384 + i*1024}")
            A("s_nop 0")
            A(f"global_load_lds_dwordx4 {v(va)}, {s(sT2,2)}")
    def consume(c, slot):
        m, x = chunks[c]
        so = (slot & 3)*16384; hi = slot >> 2
        if m == 'Q':
            for P in range(2):
                base = [[T0_, T0h], [T1_, T1h]][P][hi]
                for k2 in range(2):
                    for hh in range(2):
                        A(f"ds_read_b64_tr_b16 {rstr(wq_home(P, 2*x+k2), 2*hh, 2)}, {v(base)} offset:{so + (32*k2 + 4*hh)*256}")
        elif m == 'O':
            for P in range(2):
                base = [[U0, U0h], [U1, U1h]][P][hi]
                for k2 in range(2):
                    for hh in range(2):
                        A(f"ds_read_b64_tr_b16 {rstr(wo_home(2*x[1]+P, 2*x[0]+k2), 2*hh, 2)}, {v(base)} offset:{so + (32*k2 + 16*hh)*256}")
        elif m in 'GU':
            hm = wg_home if m == 'G' else wu_home
            for k4 in range(4):
                for hh in range(2):
                    A(f"ds_read_b64_tr_b16 {rstr(hm(4*x+k4), 2*hh, 2)}, {v(GTh if hi else GT)} offset:{so + (32*k4 + 16*hh)*128}")
        else:
            for T in range(8):
                A(f"ds_read_b64_tr_b16 {v(B+2*T,2)}, {v(DTh if hi else DT)} offset:{so + 32*T}")
            A("s_waitcnt lgkmcnt(0)")
            A(f"s_mul_i32 {s(sT0)}, {s(sH)}, 3"); A(f"s_add_u32 {s(sT0)}, {s(sT0)}, {x}")
            A(f"s_cmp_lt_u32 {s(sT0)}, 86")
            A(f"s_cbranch_scc1 L_x_wdok{x}")
            zero_regs(A, B, 16)
            A.label(f"L_x_wdok{x}")
            A(f"v_lshrrev_b32 v124, 1, {v(vWDA)}")
            A(f"s_mul_i32 {s(sT0)}, {s(sW)}, 12288"); A(f"s_add_u32 {s(sT0)}, {s(sT0)}, {L_WD}")
            A(f"v_lshlrev_b32 v124, 3, v100"); A(f"v_add_u32 v124, {s(sT0)}, v124")
            for T in range(8):
                if x < 2: A(f"ds_write_b64 {v(vWDA)}, {v(B+2*T,2)} offset:{T*1024 + 8*x}")
                else: A(f"ds_write_b64 v124, {v(B+2*T,2)} offset:{8192 + T*512}")
    ring_loader(A, chunks, 7, 6, issue, consume)
    for (hm, dst) in ((wg_home, vCSG), (wu_home, vCSU)):
        for ks in range(16):
            A(f"v_mfma_f32_16x16x32_bf16 {v(dst,4)}, {rstr(hm(ks))}, {v(vONE,4)}, {'0' if ks == 0 else v(dst,4)}")
    A("s_nop 7")

def poll_flag(A, soff_reg, lbl, target_reg=None, imm=None):
    A(f"v_mov_b32 {v(vT)}, {s(soff_reg)}")
    A(f"s_mov_b32 {s(sSPIN)}, 0")
    A.label(f"L_{lbl}")
    A(f"global_load_dword {v(vT+1)}, {v(vT)}, {s(sWS,2)} sc1")
    A(f"s_add_u32 {s(sSPIN)}, {s(sSPIN)}, 1")
    A(f"s_cmp_gt_u32 {s(sSPIN)}, 4000000"); A("s_cbranch_scc1 L_fail")
    A("s_waitcnt vmcnt(0)")
    A(f"v_readfirstlane_b32 {s(sT1)}, {v(vT+1)}")
    A("s_nop 3")
    A(f"s_cmp_eq_u32 {s(sT1)}, 0")
    A(f"s_cbranch_scc1 L_{lbl}")

def reduce_stage(A, part_off, lbl, st):
    RL, RA = B, B+32
    add64(A, sA0, sTB, part_off)
    A(f"s_mov_b32 {s(sSPIN)}, 0")
    A.label(f"L_{lbl}")
    for i in range(8):
        if i == 0: A(f"v_mov_b32 {v(vT)}, {v(vPL)}")
        else: A(f"v_add_u32 {v(vT)}, 4096, {v(vT)}")
        A(f"global_load_dwordx4 {v(RL+4*i,4)}, {v(vT)}, {s(sA0,2)} sc1")
    A(f"s_add_u32 {s(sSPIN)}, {s(sSPIN)}, 1")
    A(f"s_cmp_gt_u32 {s(sSPIN)}, 4000000"); A("s_cbranch_scc1 L_fail")
    A("s_waitcnt vmcnt(0)")
    t = vT+1
    A(f"v_bitop3_b32 {v(t)}, {v(RL)}, {v(RL+4)}, {s(sTAG)} bitop3:0x7e")
    for i in range(2, 8, 2):
        A(f"v_bitop3_b32 {v(t+1)}, {v(RL+4*i)}, {v(RL+4*i+4)}, {s(sTAG)} bitop3:0x7e")
        A(f"v_or_b32 {v(t)}, {v(t)}, {v(t+1)}")
    A(f"v_and_b32 {v(t)}, 1, {v(t)}")
    A(f"v_cmp_ne_u32 vcc, 0, {v(t)}")
    A(f"s_cbranch_vccnz L_{lbl}")
    for i in range(8):
        A(f"v_mfma_f32_16x16x32_bf16 {v(RA,4)}, {v(vSEL,4)}, {v(RL+4*i,4)}, {'0' if i == 0 else v(RA,4)}")
    A("s_nop 7")
    return RA

def bf16_round(A, r, tmp):
    A(f"v_cvt_pk_bf16_f32 {v(tmp)}, {v(r)}, {v(r+1)}")
    A(f"v_cvt_pk_bf16_f32 {v(tmp+1)}, {v(r+2)}, {v(r+3)}")
    A(f"v_lshlrev_b32 {v(r)}, 16, {v(tmp)}"); A(f"v_and_b32 {v(r+1)}, 0xffff0000, {v(tmp)}")
    A(f"v_lshlrev_b32 {v(r+2)}, 16, {v(tmp+1)}"); A(f"v_and_b32 {v(r+3)}, 0xffff0000, {v(tmp+1)}")

def partial_stage(A, part_off, nk, afrag, bfrag, pre_T, st):
    AC = (B+32, B+40); CH = (B+48, B+52)
    add64(A, sA0, sTB, part_off)
    def emit_mfma(T):
        ac = AC[T & 1]
        pre_T(T)
        prev = None
        for k in range(nk):
            op, fa = afrag(T, k)
            if prev is not None and prev != op: A("s_nop 4")
            prev = op
            for U in range(2):
                A(f"{op} {v(ac+4*U,4)}, {fa}, {bfrag(U, k)}, {'0' if k == 0 else v(ac+4*U,4)}")
    def emit_out(T):
        ac = AC[T & 1]; ch = CH[T & 1]
        A(f"v_cvt_pk_bf16_f32 {v(ch)}, {v(ac)}, {v(ac+1)}")
        A(f"v_cvt_pk_bf16_f32 {v(ch+1)}, {v(ac+2)}, {v(ac+3)}")
        A(f"v_cvt_pk_bf16_f32 {v(ch+2)}, {v(ac+4)}, {v(ac+5)}")
        A(f"v_cvt_pk_bf16_f32 {v(ch+3)}, {v(ac+6)}, {v(ac+7)}")
        A(f"v_and_or_b32 {v(ch)}, {v(ch)}, -2, {s(sTAG)}")
        A(f"global_store_dwordx4 {v(vPS)}, {v(ch,4)}, {s(sA0,2)} {st}")
        add64(A, sA0, sA0, 32768)
    emit_mfma(0)
    for T in range(1, 8):
        emit_mfma(T)
        emit_out(T-1)
    A("s_nop 7")
    emit_out(7)

def dbg_dump(A, lds_base, nbytes, off, tmp=B+76):
    per = nbytes // 4
    add64(A, sA3, sTB, off)
    A(f"s_mul_i32 {s(sT0)}, {s(sW)}, {per}")
    A(f"s_lshl_b32 {s(sT1)}, {s(sH)}, 15"); A(f"s_add_u32 {s(sT1)}, {s(sT1)}, {s(sT0)}")
    A(f"v_add_u32 {v(vT)}, {s(sT0)}, {v(vL16)}"); A(f"v_add_u32 {v(vT)}, {lds_base}, {v(vT)}")
    A(f"v_add_u32 {v(vT+1)}, {s(sT1)}, {v(vL16)}")
    for i in range(per // 1024):
        A(f"ds_read_b128 {v(tmp,4)}, {v(vT)} offset:{i*1024}")
        A("s_waitcnt lgkmcnt(0)")
        A(f"global_store_dwordx4 {v(vT+1)}, {v(tmp,4)}, {s(sA3,2)} offset:{i*1024}")
        A("s_waitcnt vmcnt(0)")

def dbg_regs(A, regs, slot0):
    add64(A, sA3, sTB, 0x280000)
    A(f"s_lshl_b32 {s(sT0)}, {s(sH)}, 2"); A(f"s_add_u32 {s(sT0)}, {s(sT0)}, {s(sW)}"); A(f"s_lshl_b32 {s(sT0)}, {s(sT0)}, 12")
    A(f"v_lshlrev_b32 v14, 2, v0"); A(f"v_add_u32 v14, {s(sT0)}, v14")
    for i, r in enumerate(regs):
        A(f"global_store_dword v14, {v(r)}, {s(sA3,2)} offset:{(slot0+i)*256}")
    A("s_waitcnt vmcnt(0)")

def x_loop(A, nteam, st='', lbl='X', dbg=False):
    A(f"s_mov_b32 {s(sIT)}, 0")
    A.label(f"L_{lbl}_loop")
    A(f"s_and_b32 {s(sTAG)}, {s(sIT)}, 1")
    A(f"s_lshl_b32 {s(sT3)}, {s(sSEG)}, 5"); A(f"s_add_u32 {s(sT3)}, {s(sT3)}, {s(sH)}")
    A(f"s_mov_b32 s44, {s(sT3)}")
    A(f"s_lshl_b32 {s(sT0)}, s44, 2"); A(f"s_add_u32 s45, {s(sT0)}, {hex(F_KV)}")
    poll_flag(A, 45, f"{lbl}_kvf")
    A(f"s_lshl_b32 {s(sT0)}, {s(sSEG)}, 15"); A(f"s_add_u32 {s(sT0)}, {s(sT0)}, {hex(WS_XN)}")
    add64s(A, sA1, sWS, sT0)
    for i in range(8):
        if i % 4 == 0:
            A(f"s_lshl_b32 {s(sT0)}, {s(sW)}, 13"); A(f"s_add_u32 {s(sT0)}, {s(sT0)}, {i*1024}")
            A(f"s_add_u32 m0, {s(sT0)}, {L_XA}")
            add64s(A, sT2, sA1, sT0)
        A(f"global_load_lds_dwordx4 {v(vL16)}, {s(sT2,2)} offset:{(i%4)*1024} sc1")
    for (ws_off, lds) in ((WS_KX, L_KX), (WS_VX, L_VX)):
        A(f"s_lshl_b32 {s(sT0)}, s44, 13"); A(f"s_lshl_b32 {s(sT1)}, {s(sW)}, 11"); A(f"s_add_u32 {s(sT0)}, {s(sT0)}, {s(sT1)}")
        A(f"s_add_u32 {s(sT0)}, {s(sT0)}, {hex(ws_off)}")
        add64s(A, sT2, sWS, sT0)
        A(f"s_add_u32 m0, {s(sT1)}, {lds}")
        A("s_nop 0")
        A(f"global_load_lds_dwordx4 {v(vL16)}, {s(sT2,2)} sc1")
        A(f"global_load_lds_dwordx4 {v(vL16)}, {s(sT2,2)} offset:1024 sc1")
    A(f"s_lshl_b32 {s(sT0)}, {s(sSEG)}, 15")
    add64s(A, sA1, sX, sT0)
    A(f"global_load_dwordx2 {v(vXV,2)}, {v(vXR)}, {s(sA1,2)}")
    A("s_waitcnt vmcnt(0)")
    A("s_barrier")
    XF, QA = B, B+16
    seq = [(U, ks) for U in range(2) for ks in range(16)]
    def rd(i, base_lds):
        U, ks = seq[i]
        A(f"ds_read_b128 {v(XF+4*(i%4),4)}, {v(vL16)} offset:{base_lds + U*16384 + ks*1024}")
    for i in range(3): rd(i, L_XA)
    for i, (U, ks) in enumerate(seq):
        if i + 3 < len(seq): rd(i+3, L_XA)
        A(f"s_waitcnt lgkmcnt({min(3, len(seq)-1-i)})")
        for P in range(2):
            d = QA + 8*P + 4*U
            A(f"v_mfma_f32_16x16x32_bf16 {v(d,4)}, {rstr(wq_home(P,ks))}, {v(XF+4*(i%4),4)}, {'0' if ks == 0 else v(d,4)}")
    A("s_nop 7")
    QP = B+32
    for U in range(2):
        for r in range(4):
            A(f"v_cvt_pk_bf16_f32 {v(QP+4*U+r)}, {v(QA+4*U+r)}, {v(QA+8+4*U+r)}")
    A(f"s_lshl_b32 {s(sT0)}, {s(sW)}, 10")
    A(f"v_add_u32 {v(vT)}, {s(sT0)}, {v(vL16)}")
    A(f"v_add_u32 {v(vT)}, {L_Q}, {v(vT)}")
    A(f"ds_write_b128 {v(vT)}, {v(QP,4)}")
    A(f"ds_write_b128 {v(vT)}, {v(QP+4,4)} offset:4096")
    A(f"s_lshl_b32 {s(sT0)}, s44, 2"); A(f"s_add_u32 s45, {s(sT0)}, {hex(F_MEM)}")
    poll_flag(A, 45, f"{lbl}_memf")
    KK, KX1, KX2, S0, S1, S2 = B+16, B+32, B+48, B+64, B+68, B+72
    A(f"s_lshl_b32 {s(sT0)}, s44, 11"); A(f"s_add_u32 {s(sT1)}, {s(sT0)}, {hex(WS_KMEM)}")
    add64s(A, sA1, sWS, sT1)
    for ks in range(4):
        A(f"global_load_dwordx4 {v(KK+4*ks,4)}, {v(vKK)}, {s(sA1,2)} offset:{ks*512} sc1")
    A(f"s_add_u32 {s(sT1)}, {s(sT0)}, {hex(WS_VMEM)}")
    add64s(A, sA2, sWS, sT1)
    VMS, VMR = 124, 112
    for i in range(4):
        A(f"global_load_dword {v(VMS+i)}, {v(vVM)}, {s(sA2,2)} offset:{i*256} sc1")
    A("s_waitcnt lgkmcnt(0)")
    A("s_barrier")
    if dbg: dbg_dump(A, L_Q, 8192, 0x300000, tmp=12)
    QF = B
    A(f"s_lshr_b32 {s(sT0)}, {s(sW)}, 1"); A(f"s_lshl_b32 {s(sT0)}, {s(sT0)}, 12")
    A(f"v_add_u32 {v(vT)}, {s(sT0)}, {v(vL16)}")
    A(f"v_add_u32 {v(vT)}, {L_Q}, {v(vT)}")
    for ks in range(4):
        A(f"ds_read_b128 {v(QF+4*ks,4)}, {v(vT)} offset:{ks*1024}")
    A(f"v_add_u32 {v(vT+1)}, {L_KX}, {v(vL16)}")
    for ks in range(4):
        A(f"ds_read_b128 {v(KX1+4*ks,4)}, {v(vT+1)} offset:{ks*1024}")
        A(f"ds_read_b128 {v(KX2+4*ks,4)}, {v(vT+1)} offset:{4096 + ks*1024}")
    A("s_waitcnt vmcnt(0) lgkmcnt(0)")
    for ks in range(4):
        A(f"v_mfma_f32_16x16x32_bf16 {v(S0,4)}, {v(KK+4*ks,4)}, {v(QF+4*ks,4)}, {'0' if ks == 0 else v(S0,4)}")
        A(f"v_mfma_f32_16x16x32_bf16 {v(S1,4)}, {v(KX1+4*ks,4)}, {v(QF+4*ks,4)}, {v(vM1,4) if ks == 0 else v(S1,4)}")
        A(f"v_mfma_f32_16x16x32_bf16 {v(S2,4)}, {v(KX2+4*ks,4)}, {v(QF+4*ks,4)}, {v(vM2,4) if ks == 0 else v(S2,4)}")
    VX = B+16
    A(f"s_and_b32 {s(sT0)}, {s(sW)}, 1"); A(f"s_lshl_b32 {s(sT0)}, {s(sT0)}, 12")
    A(f"v_add_u32 {v(vT)}, {s(sT0)}, {v(vL16)}")
    A(f"v_add_u32 {v(vT)}, {L_VX}, {v(vT)}")
    for i in range(4):
        A(f"ds_read_b128 {v(VX+4*i,4)}, {v(vT)} offset:{i*1024}")
    A("s_nop 4")
    Mx, Tm = vT+2, vT+3
    if dbg:
        A("s_nop 7"); dbg_regs(A, [S1, S1+1, S1+2, S1+3, S2, S2+1, S2+2, S2+3, S0, S0+1], 0)
    A(f"v_max3_f32 {v(Mx)}, {v(S1)}, {v(S1+1)}, {v(S1+2)}")
    A(f"v_max3_f32 {v(Mx)}, {v(Mx)}, {v(S1+3)}, {v(S2)}")
    A(f"v_max3_f32 {v(Mx)}, {v(Mx)}, {v(S2+1)}, {v(S2+2)}")
    A(f"v_max3_f32 {v(Mx)}, {v(Mx)}, {v(S2+3)}, {v(S0)}")
    A(f"v_max_f32 {v(Mx)}, {v(Mx)}, {v(S0+1)}")
    xor_swap_reduce(A, Mx, Tm, 'v_max_f32')
    A(f"v_mul_f32 {v(Mx)}, {s(sC)}, {v(Mx)}")
    for r in (S1, S1+1, S1+2, S1+3, S2, S2+1, S2+2, S2+3, S0, S0+1):
        A(f"v_fma_f32 {v(r)}, {v(r)}, {s(sC)}, -{v(Mx)}")
    for r in (S1, S1+1, S1+2, S1+3, S2, S2+1, S2+2, S2+3, S0, S0+1):
        A(f"v_exp_f32 {v(r)}, {v(r)}")
    Px, Pm = B, B+4
    A(f"v_mov_b32 {v(Pm+1)}, 0")
    A(f"v_cvt_pk_bf16_f32 {v(Px)}, {v(S1)}, {v(S1+1)}")
    A(f"v_cvt_pk_bf16_f32 {v(Px+1)}, {v(S1+2)}, {v(S1+3)}")
    A(f"v_cvt_pk_bf16_f32 {v(Px+2)}, {v(S2)}, {v(S2+1)}")
    A(f"v_cvt_pk_bf16_f32 {v(Px+3)}, {v(S2+2)}, {v(S2+3)}")
    A(f"v_cvt_pk_bf16_f32 {v(Pm)}, {v(S0)}, {v(S0+1)}")
    for i in range(4):
        A(f"v_mov_b32 {v(VMR+2*i)}, {v(VMS+i)}"); A(f"v_mov_b32 {v(VMR+2*i+1)}, 0")
    A("s_waitcnt lgkmcnt(0)")
    OA, LL = B+32, B+48
    A(f"v_mfma_f32_16x16x32_bf16 {v(LL,4)}, {v(vONE,4)}, {v(Px,4)}, 0")
    for i in range(4):
        A(f"v_mfma_f32_16x16x32_bf16 {v(OA+4*i,4)}, {v(VX+4*i,4)}, {v(Px,4)}, 0")
    A("s_nop 1")
    A(f"v_mfma_f32_16x16x16_bf16 {v(LL,4)}, {v(vONE,2)}, {v(Pm,2)}, {v(LL,4)}")
    for i in range(4):
        A(f"v_mfma_f32_16x16x16_bf16 {v(OA+4*i,4)}, {v(VMR+2*i,2)}, {v(Pm,2)}, {v(OA+4*i,4)}")
    if dbg:
        A("s_nop 7"); dbg_regs(A, [LL, OA, OA+1, Px, Pm], 10)
    A(f"v_rcp_f32 {v(Mx)}, {v(LL)}")
    A("s_nop 5")
    for i in range(16): A(f"v_mul_f32 {v(OA+i)}, {v(OA+i)}, {v(Mx)}")
    OP = B+52
    for k2 in range(2):
        for hh in range(2):
            b = OA + 8*k2 + 4*hh
            A(f"v_cvt_pk_bf16_f32 {v(OP+4*k2+2*hh)}, {v(b)}, {v(b+1)}")
            A(f"v_cvt_pk_bf16_f32 {v(OP+4*k2+2*hh+1)}, {v(b+2)}, {v(b+3)}")
    A(f"s_lshl_b32 {s(sT0)}, {s(sW)}, 11")
    A(f"v_add_u32 {v(vT)}, {s(sT0)}, {v(vL16)}")
    A(f"v_add_u32 {v(vT)}, {L_O}, {v(vT)}")
    A(f"ds_write_b128 {v(vT)}, {v(OP,4)}")
    A(f"ds_write_b128 {v(vT)}, {v(OP+4,4)} offset:1024")
    A("s_waitcnt lgkmcnt(0)")
    A("s_barrier")
    if dbg: dbg_dump(A, L_O, 8192, 0x300000 + 8192, tmp=12)
    A(f"v_add_u32 {v(vT)}, {L_O}, {v(vL16)}")
    for U in range(2):
        for k in range(4):
            A(f"ds_read_b128 {v(B+16*U+4*k,4)}, {v(vT)} offset:{U*4096 + k*1024}")
    A("s_waitcnt lgkmcnt(0)")
    partial_stage(A, XT_PART0, 4, lambda T, k: ("v_mfma_f32_16x16x32_bf16", rstr(wo_home(T, k))),
                  lambda U, k: v(B+16*U+4*k, 4), lambda T: None, st)
    RA = reduce_stage(A, XT_PART0, f"{lbl}_r0", st)
    bf16_round(A, RA, vT)
    A(f"v_lshlrev_b32 {v(vT)}, 16, {v(vXV)}"); A(f"v_add_f32 {v(vHR)}, {v(RA)}, {v(vT)}")
    A(f"v_and_b32 {v(vT)}, 0xffff0000, {v(vXV)}"); A(f"v_add_f32 {v(vHR+1)}, {v(RA+1)}, {v(vT)}")
    A(f"v_lshlrev_b32 {v(vT)}, 16, {v(vXV+1)}"); A(f"v_add_f32 {v(vHR+2)}, {v(RA+2)}, {v(vT)}")
    A(f"v_and_b32 {v(vT)}, 0xffff0000, {v(vXV+1)}"); A(f"v_add_f32 {v(vHR+3)}, {v(RA+3)}, {v(vT)}")
    A(f"v_cvt_pk_bf16_f32 {v(vT)}, {v(vHR)}, {v(vHR+1)}")
    A(f"v_cvt_pk_bf16_f32 {v(vT+1)}, {v(vHR+2)}, {v(vHR+3)}")
    A(f"v_lshlrev_b32 {v(vHR)}, 16, {v(vT)}"); A(f"v_and_b32 {v(vHR+1)}, 0xffff0000, {v(vT)}")
    A(f"v_lshlrev_b32 {v(vHR+2)}, 16, {v(vT+1)}"); A(f"v_and_b32 {v(vHR+3)}, 0xffff0000, {v(vT+1)}")
    add64(A, sA0, sTB, XT_H)
    A(f"s_mov_b64 exec, {s(sMLO32,2)}")
    A(f"global_store_dwordx2 {v(vHP)}, {v(vT,2)}, {s(sA0,2)} {st}")
    A("s_mov_b64 exec, -1")
    A("s_waitcnt vmcnt(0)")
    A("s_barrier")
    A(f"s_lshl_b32 {s(sT0)}, {s(sTEAM)}, 8"); A(f"s_add_u32 s46, {s(sT0)}, {hex(F_H)}")
    A(f"s_cmp_eq_u32 {s(sW)}, 0"); A(f"s_cbranch_scc0 L_{lbl}_nofl")
    A(f"s_lshl_b32 {s(sT0)}, {s(sH)}, 2"); A(f"s_add_u32 {s(sT0)}, {s(sT0)}, s46")
    A(f"s_add_u32 {s(sT1)}, {s(sIT)}, 1")
    A(f"v_mov_b32 {v(vT)}, {s(sT0)}"); A(f"v_mov_b32 {v(vT+1)}, {s(sT1)}")
    A("s_mov_b64 exec, 1")
    A(f"global_store_dword {v(vT)}, {v(vT+1)}, {s(sWS,2)} {st}")
    A("s_mov_b64 exec, -1")
    A.label(f"L_{lbl}_nofl")
    A(f"v_and_b32 {v(vT)}, 31, v0"); A(f"v_lshlrev_b32 {v(vT)}, 2, {v(vT)}"); A(f"v_add_u32 {v(vT)}, s46, {v(vT)}")
    A(f"s_add_u32 s47, {s(sIT)}, 1")
    A(f"s_mov_b32 {s(sSPIN)}, 0")
    A.label(f"L_{lbl}_hw")
    A(f"global_load_dword {v(vT+1)}, {v(vT)}, {s(sWS,2)} sc1")
    A(f"s_add_u32 {s(sSPIN)}, {s(sSPIN)}, 1")
    A(f"s_cmp_gt_u32 {s(sSPIN)}, 4000000"); A("s_cbranch_scc1 L_fail")
    A("s_waitcnt vmcnt(0)")
    A(f"v_cmp_gt_u32 vcc, s47, {v(vT+1)}")
    A(f"s_cbranch_vccnz L_{lbl}_hw")
    add64(A, sA1, sTB, XT_H)
    for i in range(8):
        if i % 4 == 0:
            A(f"s_lshl_b32 {s(sT0)}, {s(sW)}, 13"); A(f"s_add_u32 {s(sT0)}, {s(sT0)}, {i*1024}")
            A(f"s_add_u32 m0, {s(sT0)}, {L_XA}")
            add64s(A, sT2, sA1, sT0)
        A(f"global_load_lds_dwordx4 {v(vL16)}, {s(sT2,2)} offset:{(i%4)*1024} sc1")
    A("s_waitcnt vmcnt(0)")
    A("s_barrier")
    GA, UA = B+16, B+24
    A(f"s_cmp_eq_u32 {s(sW)}, 3"); A(f"s_cbranch_scc1 L_{lbl}_stats")
    for i in range(3): rd(i, L_XA)
    for i, (U, ks) in enumerate(seq):
        if i + 3 < len(seq): rd(i+3, L_XA)
        A(f"s_waitcnt lgkmcnt({min(3, len(seq)-1-i)})")
        A(f"v_mfma_f32_16x16x32_bf16 {v(GA+4*U,4)}, {rstr(wg_home(ks))}, {v(XF+4*(i%4),4)}, {'0' if ks == 0 else v(GA+4*U,4)}")
        A(f"v_mfma_f32_16x16x32_bf16 {v(UA+4*U,4)}, {rstr(wu_home(ks))}, {v(XF+4*(i%4),4)}, {'0' if ks == 0 else v(UA+4*U,4)}")
    A(f"s_branch L_{lbl}_s7j")
    A.label(f"L_{lbl}_stats")
    for i in range(3): rd(i, L_XA)
    for i, (U, ks) in enumerate(seq):
        if i + 3 < len(seq): rd(i+3, L_XA)
        A(f"s_waitcnt lgkmcnt({min(3, len(seq)-1-i)})")
        A(f"v_mfma_f32_16x16x32_bf16 {v(GA+4*U,4)}, {v(vONE,4)}, {v(XF+4*(i%4),4)}, {'0' if ks == 0 else v(GA+4*U,4)}")
        A(f"v_mfma_f32_16x16x32_bf16 {v(UA+4*U,4)}, {v(XF+4*(i%4),4)}, {v(XF+4*(i%4),4)}, {'0' if ks == 0 else v(UA+4*U,4)}")
    A("s_nop 7")
    A(f"v_and_b32 {v(vT)}, 3, v0"); A(f"v_bfe_u32 {v(vT+1)}, v0, 2, 2"); A(f"v_lshrrev_b32 {v(vT+2)}, 4, v0")
    for U in range(2):
        g = UA + 4*U
        for r in (1, 2, 3):
            A(f"v_cmp_eq_u32 vcc, {r}, {v(vT)}"); A("s_nop 1")
            A(f"v_cndmask_b32 {v(g)}, {v(g)}, {v(g+r)}, vcc")
        A(f"v_cmp_eq_u32 vcc, {v(vT+1)}, {v(vT+2)}"); A("s_nop 1")
        A(f"v_cndmask_b32 {v(g)}, 0, {v(g)}, vcc")
        xor_swap_reduce(A, g, g+1, 'v_add_f32')
        m = GA + 4*U
        A(f"v_mul_f32 {v(m)}, 0x3b000000, {v(m)}")
        A(f"v_mul_f32 {v(g)}, 0x3b000000, {v(g)}")
        A(f"v_fma_f32 {v(g)}, -{v(m)}, {v(m)}, {v(g)}")
        A(f"v_max_f32 {v(g)}, 0, {v(g)}")
        A(f"v_add_f32 {v(g)}, 0x3727c5ac, {v(g)}")
        A(f"v_rsq_f32 {v(m+1)}, {v(g)}")
    A(f"v_and_b32 {v(vT)}, 15, v0"); A(f"v_lshlrev_b32 {v(vT)}, 3, {v(vT)}"); A(f"v_add_u32 {v(vT)}, {L_ST}, {v(vT)}")
    A("s_mov_b64 exec, 0xffff")
    for U in range(2): A(f"ds_write_b64 {v(vT)}, {v(GA+4*U,2)} offset:{U*128}")
    A("s_mov_b64 exec, -1")
    A("s_waitcnt lgkmcnt(0)")
    A.label(f"L_{lbl}_s7j")
    A("s_barrier")
    A(f"s_cmp_eq_u32 {s(sW)}, 3"); A(f"s_cbranch_scc1 L_{lbl}_hfdone")
    A(f"v_and_b32 {v(vT)}, 15, v0"); A(f"v_lshlrev_b32 {v(vT)}, 3, {v(vT)}"); A(f"v_add_u32 {v(vT)}, {L_ST}, {v(vT)}")
    ST = B
    for U in range(2): A(f"ds_read_b64 {v(ST+2*U,2)}, {v(vT)} offset:{U*128}")
    A("s_waitcnt lgkmcnt(0)")
    HP = B+8
    for U in range(2):
        for r in range(4):
            g, u = GA+4*U+r, UA+4*U+r
            A(f"v_fma_f32 {v(g)}, -{v(ST+2*U)}, {v(vCSG+r)}, {v(g)}")
            A(f"v_fma_f32 {v(u)}, -{v(ST+2*U)}, {v(vCSU+r)}, {v(u)}")
            A(f"v_mul_f32 {v(g)}, {v(g)}, {v(ST+2*U+1)}")
            A(f"v_mul_f32 {v(u)}, {v(u)}, {v(ST+2*U+1)}")
            A(f"v_mul_f32 {v(g)}, {v(g)}, {v(u)}")
        A(f"v_cvt_pk_bf16_f32 {v(HP+2*U)}, {v(GA+4*U)}, {v(GA+4*U+1)}")
        A(f"v_cvt_pk_bf16_f32 {v(HP+2*U+1)}, {v(GA+4*U+2)}, {v(GA+4*U+3)}")
    A(f"s_mul_i32 {s(sT0)}, {s(sH)}, 3"); A(f"s_add_u32 {s(sT0)}, {s(sT0)}, {s(sW)}")
    A(f"s_cmp_lt_u32 {s(sT0)}, 86"); A(f"s_cbranch_scc1 L_{lbl}_hfok")
    zero_regs(A, HP, 4)
    A.label(f"L_{lbl}_hfok")
    A(f"s_cmp_eq_u32 {s(sW)}, 2"); A(f"s_cbranch_scc1 L_{lbl}_hf2")
    A(f"s_lshl_b32 {s(sT0)}, {s(sW)}, 3"); A(f"s_add_u32 {s(sT0)}, {s(sT0)}, {L_HF}")
    A(f"v_add_u32 {v(vT)}, {s(sT0)}, {v(vL16)}")
    for U in range(2): A(f"ds_write_b64 {v(vT)}, {v(HP+2*U,2)} offset:{U*1024}")
    A(f"s_branch L_{lbl}_hfw")
    A.label(f"L_{lbl}_hf2")
    A(f"v_lshlrev_b32 {v(vT)}, 3, v0"); A(f"v_add_u32 {v(vT)}, {L_HF + 2048}, {v(vT)}")
    for U in range(2): A(f"ds_write_b64 {v(vT)}, {v(HP+2*U,2)} offset:{U*512}")
    A.label(f"L_{lbl}_hfw")
    A("s_waitcnt lgkmcnt(0)")
    A.label(f"L_{lbl}_hfdone")
    A("s_barrier")
    HF32, HF16, WF = B, B+8, B+12
    A(f"v_add_u32 {v(vT)}, {L_HF}, {v(vL16)}")
    for U in range(2): A(f"ds_read_b128 {v(HF32+4*U,4)}, {v(vT)} offset:{U*1024}")
    A(f"v_lshlrev_b32 {v(vT+1)}, 3, v0"); A(f"v_add_u32 {v(vT+1)}, {L_HF + 2048}, {v(vT+1)}")
    for U in range(2): A(f"ds_read_b64 {v(HF16+2*U,2)}, {v(vT+1)} offset:{U*512}")
    A(f"s_mul_i32 {s(sT0)}, {s(sW)}, 12288"); A(f"s_add_u32 {s(sT0)}, {s(sT0)}, {L_WD + 8192}")
    A(f"v_lshlrev_b32 {v(vT+2)}, 3, v0"); A(f"v_add_u32 {v(vT+2)}, {s(sT0)}, {v(vT+2)}")
    def pre_T(T):
        w0 = WF + 8*(T & 1)
        A(f"ds_read_b128 {v(w0,4)}, {v(vWDA)} offset:{T*1024}")
        A(f"ds_read_b64 {v(w0+4,2)}, {v(vT+2)} offset:{T*512}")
        A("s_waitcnt lgkmcnt(0)")
        A("s_nop 0")
    def afrag(T, k):
        w0 = WF + 8*(T & 1)
        return ("v_mfma_f32_16x16x32_bf16", v(w0,4)) if k == 0 else ("v_mfma_f32_16x16x16_bf16", v(w0+4,2))
    partial_stage(A, XT_PART1, 2, afrag, lambda U, k: v(HF32+4*U,4) if k == 0 else v(HF16+2*U,2), pre_T, st)
    RA = reduce_stage(A, XT_PART1, f"{lbl}_r1", st)
    bf16_round(A, RA, vT)
    for r in range(4): A(f"v_add_f32 {v(RA+r)}, {v(RA+r)}, {v(vHR+r)}")
    A(f"v_cvt_pk_bf16_f32 {v(vT)}, {v(RA)}, {v(RA+1)}")
    A(f"v_cvt_pk_bf16_f32 {v(vT+1)}, {v(RA+2)}, {v(RA+3)}")
    A(f"s_lshl_b32 {s(sT0)}, {s(sSEG)}, 15")
    add64s(A, sA1, sOUT, sT0)
    A(f"s_mov_b64 exec, {s(sMLO32,2)}")
    A(f"global_store_dwordx2 {v(vXR)}, {v(vT,2)}, {s(sA1,2)}")
    A("s_mov_b64 exec, -1")
    A(f"s_add_u32 {s(sIT)}, {s(sIT)}, 1")
    A(f"s_add_u32 {s(sSEG)}, {s(sSEG)}, {nteam}")
    A(f"s_cmp_lt_u32 {s(sSEG)}, 64")
    A(f"s_cbranch_scc1 L_{lbl}_loop")
    A("s_waitcnt vmcnt(0)")

def x_init_buffers(A, st):
    A(f"v_mov_b32 v108, -1"); A("v_mov_b32 v109, -1"); A("v_mov_b32 v110, -1"); A("v_mov_b32 v111, -1")
    A(f"s_lshl_b32 {s(sT0)}, {s(sH)}, 15"); A(f"s_lshl_b32 {s(sT1)}, {s(sW)}, 13"); A(f"s_add_u32 {s(sT0)}, {s(sT0)}, {s(sT1)}")
    A(f"v_lshlrev_b32 v106, 4, v0"); A(f"v_add_u32 v106, {s(sT0)}, v106")
    for part in (XT_PART0, XT_PART1):
        add64(A, sA0, sTB, part)
        for i in range(8):
            if i % 4 == 0 and i > 0: add64(A, sA0, sA0, 4096)
            A(f"global_store_dwordx4 v106, v[108:111], {s(sA0,2)} offset:{(i%4)*1024} {st}")
```

```python
import sys
from common import *
import chain3 as C3, kv as KV, xrole as XR
from teamlib import preamble, ticket
NAME = 'sequential_preLN__memory_aug_recurrent_mem_tr__glu_gated_bilinear__prompt'
KNAME = NAME + '_kernel'
sXCC, sRANK, sMODE, sTEAMG, sCB = 80, 81, 82, 83, 84
sW, sH, sWS, sDBG = 19, 18, 14, 16
D_LN, D_CARR, D_CLOAD, D_XARR, D_FB = 32, 36, 40, 44, 64
N_X_TEAMS, N_KV_TEAMS = 5, 2

def wait_dbg(A, off_imm, target, lbl, fail, off_sreg=None, vt=1):
    A(f"s_add_u32 s56, {s(sCB)}, {off_imm}")
    if off_sreg is not None: A(f"s_add_u32 s56, s56, {s(off_sreg)}")
    A(f"v_mov_b32 {v(vt)}, s56")
    A("s_mov_b32 s56, 0")
    A.label(f"L_{lbl}")
    A(f"global_load_dword {v(vt+1)}, {v(vt)}, {s(sDBG,2)} sc1")
    A("s_add_u32 s56, s56, 1"); A("s_cmp_gt_u32 s56, 4000000"); A(f"s_cbranch_scc1 {fail}")
    A("s_waitcnt vmcnt(0)")
    A(f"v_readfirstlane_b32 s57, {v(vt+1)}"); A("s_nop 3")
    A(f"s_cmp_ge_u32 s57, {target}"); A(f"s_cbranch_scc0 L_{lbl}")
def arrive_dbg(A, off_imm, lbl, off_sreg=None, vt=1):
    A("s_waitcnt vmcnt(0)"); A("s_barrier")
    A(f"s_cmp_eq_u32 {s(sW)}, 0"); A(f"s_cbranch_scc0 L_{lbl}")
    A(f"s_add_u32 s56, {s(sCB)}, {off_imm}")
    if off_sreg is not None: A(f"s_add_u32 s56, s56, {s(off_sreg)}")
    A(f"v_mov_b32 {v(vt)}, s56"); A(f"v_mov_b32 {v(vt+1)}, 1")
    A("s_mov_b64 exec, 1")
    A(f"global_atomic_add {v(vt)}, {v(vt+1)}, {s(sDBG,2)}")
    A("s_mov_b64 exec, -1")
    A.label(f"L_{lbl}")
def verify(A, lbl, fail, vt=1):
    A(f"s_cmp_eq_u32 {s(sMODE)}, 0"); A(f"s_cbranch_scc0 L_{lbl}_ok")
    A(f"v_mbcnt_lo_u32_b32 {v(vt)}, -1, 0"); A(f"v_mbcnt_hi_u32_b32 {v(vt)}, -1, {v(vt)}")
    A(f"v_and_b32 {v(vt)}, 7, {v(vt)}"); A(f"v_lshlrev_b32 {v(vt)}, 2, {v(vt)}")
    A("s_mov_b32 s56, 0")
    A.label(f"L_{lbl}_v")
    A(f"global_load_dword {v(vt+1)}, {v(vt)}, {s(sDBG,2)} sc1")
    A("s_add_u32 s56, s56, 1"); A("s_cmp_gt_u32 s56, 4000000"); A(f"s_cbranch_scc1 {fail}")
    A("s_waitcnt vmcnt(0)")
    A(f"v_cmp_lt_u32 vcc, 32, {v(vt+1)}"); A("s_cbranch_vccnz L_fallback")
    A(f"v_cmp_ne_u32 vcc, 32, {v(vt+1)}"); A(f"s_cbranch_vccnz L_{lbl}_v")
    A.label(f"L_{lbl}_ok")

def build(fname, stamps=None, force_fallback=False, timing=False, x_delay=True, slR=2, slG=0):
    A = Asm()
    hdr = open('cdna_kernels/' + NAME + '.s.ref').read().split('\n')
    for ln in hdr:
        if ln.startswith('; @launch'): A.raw("; @launch grid=(256,1,1) block=(256,1,1) lds=163840")
        elif ln.startswith(';'): A.raw(ln)
        else: break
    A.raw(f'.amdgcn_target "amdgcn-amd-amdhsa--gfx950"\n.text\n.globl {KNAME}\n.p2align 8\n.type {KNAME},@function\n{KNAME}:')
    preamble(A, sW)
    A(f"s_load_dwordx2 {s(sDBG,2)}, s[0:1], 96")
    A(f"s_load_dwordx2 {s(sWS,2)}, s[0:1], 104")
    A(f"s_getreg_b32 {s(sXCC)}, hwreg(HW_REG_XCC_ID, 0, 4)")
    if timing: A("s_memrealtime s[86:87]")
    A("s_waitcnt lgkmcnt(0)")
    if force_fallback:
        A(f"s_and_b32 s56, s2, 3"); A(f"s_lshr_b32 s57, s2, 5"); A(f"s_add_u32 s56, s56, s57"); A(f"s_and_b32 {s(sXCC)}, s56, 7")
    A(f"s_and_b32 {s(sXCC)}, {s(sXCC)}, 7")
    ticket(A, sW, sDBG, sXCC, sRANK, 163832)
    A(f"s_mov_b32 {s(sMODE)}, 0"); A(f"s_mov_b32 {s(sCB)}, 0")
    A(f"s_mov_b32 {s(sTEAMG)}, {s(sXCC)}"); A(f"s_mov_b32 {s(sH)}, {s(sRANK)}")
    A(f"s_cmp_lt_u32 {s(sRANK)}, 32"); A("s_cbranch_scc0 L_fallback")
    A.label("L_dispatch")
    A(f"s_cmp_eq_u32 {s(sTEAMG)}, 0"); A("s_cbranch_scc1 L_role_chain")
    A(f"s_cmp_le_u32 {s(sTEAMG)}, {N_KV_TEAMS}"); A("s_cbranch_scc1 L_role_kv")
    A("s_branch L_role_x")
    A.label("L_fallback")
    A("s_mov_b64 exec, -1")
    A("s_waitcnt vmcnt(0) lgkmcnt(0)"); A("buffer_wbl2 sc1"); A("s_waitcnt vmcnt(0)")
    A(f"s_mov_b32 {s(sCB)}, 0")
    arrive_dbg(A, D_FB, 'fb_arr')
    wait_dbg(A, D_FB, 256, 'fb_wait', 'L_fail0')
    A("buffer_inv sc1"); A("s_waitcnt vmcnt(0)")
    A("v_mbcnt_lo_u32_b32 v1, -1, 0"); A("v_mbcnt_hi_u32_b32 v1, -1, v1")
    A("v_and_b32 v1, 7, v1"); A("v_lshlrev_b32 v1, 2, v1")
    A(f"global_load_dword v2, v1, {s(sDBG,2)} sc1"); A("s_waitcnt vmcnt(0)")
    A(f"s_mov_b32 s58, {s(sRANK)}")
    for x in range(7):
        A(f"v_readlane_b32 s57, v2, {x}"); A("s_nop 3")
        A(f"s_cmp_gt_u32 {s(sXCC)}, {x}"); A("s_cselect_b32 s57, s57, 0"); A("s_add_u32 s58, s58, s57")
    A(f"s_lshr_b32 {s(sTEAMG)}, s58, 5"); A(f"s_and_b32 {s(sH)}, s58, 31")
    A(f"s_mov_b32 {s(sMODE)}, 1"); A(f"s_mov_b32 {s(sCB)}, 128")
    A("v_mbcnt_lo_u32_b32 v0, -1, 0"); A("v_mbcnt_hi_u32_b32 v0, -1, v0")
    A("s_barrier")
    A("s_branch L_dispatch")
    A.label("L_fail0")
    A("v_mov_b32 v1, 252"); A("v_mov_b32 v2, 0xdead"); A(f"global_store_dword v1, v2, {s(sDBG,2)}")
    A("s_endpgm")
    A.label("L_exit")
    A("s_endpgm")
    A.label("L_role_kv")
    A(f"s_load_dwordx2 {s(KV.sWK,2)}, s[0:1], 24"); A(f"s_load_dwordx2 {s(KV.sWV,2)}, s[0:1], 32")
    A("s_waitcnt lgkmcnt(0)")
    verify(A, 'kv', 'L_fail_kv')
    KV.kv_load_weights(A)
    wait_dbg(A, D_LN, 32*N_X_TEAMS, 'kv_ln', 'L_fail_kv')
    A(f"s_sub_u32 s42, {s(sTEAMG)}, 1")
    KV.kv_loop(A, 42, N_KV_TEAMS, 64)
    A("s_endpgm")
    A.label("L_fail_kv")
    A("v_mov_b32 v1, 248"); A("v_mov_b32 v2, 0xdead"); A(f"global_store_dword v1, v2, {s(sDBG,2)}")
    A("s_endpgm")
    A.label("L_role_x")
    for (r, off) in ((XR.sX, 0), (XR.sWQ, 16), (XR.sWO, 40), (XR.sWG, 64), (XR.sWU, 72), (XR.sWD, 80), (XR.sOUT, 88)):
        A(f"s_load_dwordx2 {s(r,2)}, s[0:1], {off}")
    A("s_waitcnt lgkmcnt(0)")
    verify(A, 'x', 'L_fail')
    A(f"s_sub_u32 {s(XR.sTEAM)}, {s(sTEAMG)}, {1 + N_KV_TEAMS}")
    A(f"s_lshl_b32 s40, {s(XR.sTEAM)}, 5"); A(f"s_add_u32 s40, s40, {s(sH)}")
    A(f"s_cmp_eq_u32 {s(sW)}, 1"); A("s_cbranch_scc0 L_x_nozero")
    A("s_cmp_lt_u32 s40, 32"); A("s_cbranch_scc0 L_x_nozero")
    A("s_lshl_b32 s41, s40, 10"); A(f"s_add_u32 s41, s41, {hex(WS_FLAG)}")
    A("v_lshlrev_b32 v1, 4, v0"); A("v_add_u32 v1, s41, v1")
    zero_regs(A, 4, 4)
    A(f"global_store_dwordx4 v1, v[4:7], {s(sWS,2)} sc1")
    A.label("L_x_nozero")
    A(f"s_cmp_eq_u32 {s(sW)}, 0"); A("s_cbranch_scc0 L_x_noln")
    A("s_cmp_lt_u32 s40, 128"); A("s_cbranch_scc0 L_x_noln")
    KV.ln_tile(A, 40, 'ln')
    A.label("L_x_noln")
    arrive_dbg(A, D_LN, 'x_lnarr')
    A(f"s_mov_b32 {s(XR.sSEG)}, {s(XR.sTEAM)}")
    A(f"s_mul_i32 {s(XR.sT0)}, {s(XR.sTEAM)}, {XT_STRIDE}"); A(f"s_add_u32 {s(XR.sT0)}, {s(XR.sT0)}, {hex(WS_XT)}")
    add64s(A, XR.sTB, sWS, XR.sT0)
    A(f"s_cmp_eq_u32 {s(sMODE)}, 0"); A("s_cbranch_scc0 L_x_initS")
    XR.x_init_buffers(A, '')
    A("s_branch L_x_initD")
    A.label("L_x_initS")
    XR.x_init_buffers(A, 'sc1')
    A.label("L_x_initD")
    A(f"s_lshl_b32 s41, {s(XR.sTEAM)}, 2")
    arrive_dbg(A, D_XARR, 'x_tarr', off_sreg=41)
    XR.x_addresses(A)
    if x_delay: wait_dbg(A, D_CLOAD, 32, 'x_cload', 'L_fail', vt=10)
    XR.x_load_weights(A)
    wait_dbg(A, D_LN, 32*N_X_TEAMS, 'x_lnw', 'L_fail', vt=10)
    A(f"s_lshl_b32 s41, {s(XR.sTEAM)}, 2")
    wait_dbg(A, D_XARR, 32, 'x_tw', 'L_fail', off_sreg=41, vt=10)
    A(f"s_cmp_eq_u32 {s(sMODE)}, 0"); A("s_cbranch_scc0 L_x_slow")
    XR.x_loop(A, N_X_TEAMS, st='', lbl='XF')
    A("s_branch L_x_end")
    A.label("L_x_slow")
    XR.x_loop(A, N_X_TEAMS, st='sc1', lbl='XS')
    A.label("L_x_end")
    if timing:
        A("s_memrealtime s[88:89]"); A("s_waitcnt lgkmcnt(0)")
        timing_store(A, 2)
    A("s_endpgm")
    A.label("L_fail")
    A("v_mov_b32 v1, 244"); A("v_mov_b32 v2, 0xdead"); A(f"global_store_dword v1, v2, {s(sDBG,2)}")
    A("s_endpgm")
    A.label("L_role_chain")
    for (r, off) in ((C3.sWQ, 16), (C3.sWK, 24), (C3.sWV, 32), (C3.sWO, 40), (C3.sM0, 8)):
        A(f"s_load_dwordx2 {s(r,2)}, s[0:1], {off}")
    A("s_waitcnt lgkmcnt(0)")
    C3.prologue_addresses(A)
    A(f"s_cmp_eq_u32 {s(sMODE)}, 0"); A("s_cbranch_scc0 L_c_initS")
    C3.chain_init_buffers(A, '')
    A("s_branch L_c_initD")
    A.label("L_c_initS")
    C3.chain_init_buffers(A, 'sc1')
    A.label("L_c_initD")
    arrive_dbg(A, D_CARR, 'c_arr', vt=106)
    C3.loader_addresses(A)
    for w in range(4):
        A(f"s_cmp_eq_u32 {s(sW)}, {w}"); A(f"s_cbranch_scc1 L_c_load{w}")
    A("s_endpgm")
    for w in range(4):
        A.label(f"L_c_load{w}")
        C3.loader(A, w)
        if w < 3: A("s_branch L_c_loaded")
    A.label("L_c_loaded")
    if timing: A("s_memrealtime s[88:89]")
    arrive_dbg(A, D_CLOAD, 'c_larr', vt=106)
    verify(A, 'c', 'L_fail_c', vt=106)
    wait_dbg(A, D_CARR, 32, 'c_tw', 'L_fail_c', vt=106)
    wait_dbg(A, D_LN, 32*N_X_TEAMS, 'c_lnw', 'L_fail_c', vt=106)
    C3.chain_state0(A, 'L_fail_c')
    if stamps:
        for k in range(16): A(f"s_mov_b32 {s(C3.sTS+k)}, 0")
    if timing: A("s_memrealtime s[90:91]"); A("s_waitcnt lgkmcnt(0)")
    for pfx, mode in (('F', 0), ('S', 1)):
        for w in range(4):
            A(f"s_cmp_eq_u32 {s(sMODE)}, {mode}"); A(f"s_cselect_b32 s56, {s(sW)}, 99"); A(f"s_cmp_eq_u32 s56, {w}")
            A(f"s_cbranch_scc1 L_c_start_{pfx}{w}")
    A("s_endpgm")
    A.label("L_fail_c")
    A("v_mov_b32 v1, 240"); A("v_mov_b32 v2, 0xdead"); A(f"global_store_dword v1, v2, {s(sDBG,2)}")
    A("s_endpgm")
    for pfx, st in (('F', ''), ('S', 'sc1')):
        for w in range(4):
            A.label(f"L_c_start_{pfx}{w}")
            if stamps:
                A(f"s_memtime {s(C3.sTS,2)}"); A("s_waitcnt lgkmcnt(0)"); A(f"s_mov_b32 {s(C3.sTS+2)}, {s(C3.sTS)}")
            C3.chain_start(A, w, pfx)
            C3.step_loop(A, w, pfx, st_team=st, stamps=stamps if pfx == 'F' else None, slR=slR, slG=slG)
        A.label(f"L_{pfx}_fail")
        A("v_mov_b32 v1, 240"); A("v_mov_b32 v2, 0xdead"); A(f"global_store_dword v1, v2, {s(sDBG,2)}")
        A.label(f"L_{pfx}_done")
        if timing and pfx == 'F':
            A("s_memrealtime s[92:93]"); A("s_waitcnt lgkmcnt(0)")
            timing_store(A, 0, stamps)
        A("s_endpgm")
    A.raw(f""".section .rodata,"a"
.p2align 6
.amdhsa_kernel {KNAME}
  .amdhsa_next_free_vgpr 512
  .amdhsa_next_free_sgpr 102
  .amdhsa_accum_offset 256
  .amdhsa_group_segment_fixed_size 0
  .amdhsa_kernarg_size 112
  .amdhsa_user_sgpr_count 2
  .amdhsa_user_sgpr_kernarg_segment_ptr 1
  .amdhsa_system_sgpr_workgroup_id_x 1
.end_amdhsa_kernel""")
    txt = A.text()
    open(fname, 'w').write(txt)
    return txt

WS_TIME = 0x8000000
def timing_store(A, kind, stamps=None):
    A(f"s_lshl_b32 s56, {s(sTEAMG)}, 5"); A(f"s_add_u32 s56, s56, {s(sH)}"); A("s_lshl_b32 s56, s56, 2"); A(f"s_add_u32 s56, s56, {s(sW)}")
    A("s_lshl_b32 s56, s56, 6"); A(f"s_add_u32 s56, s56, {hex(WS_TIME)}")
    A("v_mov_b32 v1, s56")
    A("v_mov_b32 v4, s86"); A("v_mov_b32 v5, s88"); A("v_mov_b32 v6, s90"); A("v_mov_b32 v7, s92")
    A(f"global_store_dwordx4 v1, v[4:7], {s(sWS,2)}")
    if stamps:
        for q in range(3):
            for i in range(4): A(f"v_mov_b32 {v(8+i)}, {s(C3.sTS+4+4*q+i)}")
            A(f"global_store_dwordx4 v1, v[8:11], {s(sWS,2)} offset:{16+16*q}")
            A("s_nop 1")
    A("s_waitcnt vmcnt(0)")

if __name__ == '__main__':
    out = 'cdna_kernels/' + NAME + '.s'
    txt = build(out)
    check_hazards(txt, mfma_states=3)
    print(len(txt), 'bytes', txt.count('\n'), 'lines')
    build('m_time.s', timing=True)
    build('m_fb.s', force_fallback=True)
```

```python
from common import *

L_MEM = 131072
L_QK  = L_MEM + 8192
L_O   = L_QK + 4096
L_KX  = L_O + 2048
L_VX  = L_KX + 8192
L_END = L_VX + 8192
L_MISC = L_END

vL16, vWU, vC, vQWA, vQWB, vQR, vKD, vOW, vPS, vFLG, vMS, vKM, vVM, vDUM, vRA, vIDX = range(16)
vSEL, vONE, vMA = 16, 20, 24
vQ0, vQ1, vK0, vK1, vV0, vV1 = 56, 60, 64, 68, 72, 76
WV = 128

sWQ, sWK, sWV, sWO, sM0, sWS, sDBG = 4, 6, 8, 10, 12, 14, 16
sH, sW, sSTEP = 18, 19, 20
sPSA, sPSB, sPLD, sGAT, sPUB, sPOI, sKX, sVX, sKM, sVM = 22, 24, 26, 28, 30, 32, 34, 36, 38, 40
sTAG, sSPIN, sC = 42, 43, 44
sM33, sMLO, sMPUB = 46, 48, 50
sT0, sT1, sT2, sT3 = 52, 53, 54, 55
sTS = 60
sKF, sMF = 76, 77
sSRD = 96

def own_t(w): return (2*w, 2*w+1)
def other_t(w): return [(2*w + 2 + i) % 8 for i in range(6)]
_regs = [('a', 8*i) for i in range(32)] + [('v', WV + 8*i) for i in range(16)]
def home(w, key):
    m = key[0]
    if m in 'QK':
        t = key[2]
        if t in own_t(w): return None
        return _regs[(0 if m == 'Q' else 12) + 6*key[1] + other_t(w).index(t)]
    if m == 'V':
        return _regs[24 + 8*key[1] + key[2]]
    if key[2] == 1: return None
    return _regs[40 + key[1]]
def res_index(w, key):
    m = key[0]
    if m in 'QK': return (0 if m == 'Q' else 4) + 2*own_t(w).index(key[2]) + key[1]
    return 8 + key[1]
def rstr(h, off=0, n=8):
    k, b = h
    return (a if k == 'a' else v)(b + off, n)
def res_read(A, w, key, dst):
    off = res_index(w, key)*2048
    A(f"ds_read_b128 {v(dst,4)}, {v(vRA)} offset:{off}")
    A(f"ds_read_b128 {v(dst+4,4)}, {v(vRA)} offset:{off+1024}")

def prologue_addresses(A):
    layB = True
    L, t1, t2, t3, n_, kq_ = 100, 101, 102, 103, 104, 105
    A(f"v_mov_b32 {v(L)}, v0")
    A(f"v_and_b32 {v(n_)}, 15, {v(L)}")
    A(f"v_lshrrev_b32 {v(kq_)}, 4, {v(L)}")
    A(f"v_lshlrev_b32 {v(t1)}, 4, {v(L)}")
    A(f"v_add_u32 {v(vC)}, {L_MEM}, {v(t1)}")
    A(f"s_lshl_b32 {s(sT0)}, {s(sW)}, 15")
    A(f"v_add_u32 {v(vRA)}, {s(sT0)}, {v(t1)}")
    A(f"v_lshlrev_b32 {v(vWU)}, 5, {v(L)}")
    A(f"v_mov_b32 {v(vL16)}, {v(t1)}")
    A(f"v_bfe_u32 {v(t2)}, {v(L)}, 1, 1")
    A(f"v_mov_b32 {v(vIDX)}, 0x44444444")
    A(f"v_mov_b32 {v(t3)}, 0xeeeeeeee")
    A(f"v_cmp_eq_u32 vcc, 1, {v(t2)}")
    A("s_nop 1")
    A(f"v_cndmask_b32 {v(vIDX)}, {v(vIDX)}, {v(t3)}, vcc")
    A(f"v_lshrrev_b32 {v(t2)}, 2, {v(n_)}")
    A(f"v_lshlrev_b32 {v(t3)}, 1, {v(kq_)}")
    A(f"v_xor_b32 {v(vQWA)}, {v(t3)}, {v(t2)}")
    A(f"v_xor_b32 {v(vQWB)}, 1, {v(vQWA)}")
    for r in (vQWA, vQWB):
        A(f"v_lshl_add_u32 {v(r)}, {v(t2)}, 4, {v(r)}")
        A(f"v_lshlrev_b32 {v(r)}, 4, {v(r)}")
        A(f"v_and_b32 {v(t3)}, 3, {v(n_)}")
        A(f"v_lshl_add_u32 {v(r)}, {v(t3)}, 2, {v(r)}")
        A(f"s_lshl_b32 {s(sT0)}, {s(sW)}, 10")
        A(f"s_add_u32 {s(sT0)}, {s(sT0)}, {L_QK}")
        A(f"v_add_u32 {v(r)}, {s(sT0)}, {v(r)}")
    A(f"v_xor_b32 {v(t2)}, {v(n_)}, {v(kq_)}")
    A(f"v_lshl_add_u32 {v(t2)}, {v(kq_)}, 4, {v(t2)}")
    A(f"v_lshlrev_b32 {v(t2)}, 4, {v(t2)}")
    A(f"v_add_u32 {v(vQR)}, {L_QK}, {v(t2)}")
    A(f"v_lshrrev_b32 {v(t2)}, 2, {v(n_)}")
    A(f"v_lshlrev_b32 {v(t2)}, 1, {v(t2)}")
    A(f"v_and_b32 {v(t3)}, 1, {v(n_)}")
    A(f"v_add3_u32 {v(t2)}, {v(t2)}, {v(t3)}, 8")
    A(f"v_xor_b32 {v(t2)}, {v(t2)}, {v(kq_)}")
    A(f"v_lshl_add_u32 {v(t2)}, {v(kq_)}, 4, {v(t2)}")
    A(f"v_lshlrev_b32 {v(t2)}, 4, {v(t2)}")
    A(f"v_add_u32 {v(vKD)}, {L_QK}, {v(t2)}")
    A(f"v_lshrrev_b32 {v(t2)}, 1, {v(n_)}")
    A(f"v_lshlrev_b32 {v(t2)}, 2, {v(t2)}")
    A(f"v_and_b32 {v(t3)}, 1, {v(n_)}")
    A(f"v_add_u32 {v(t2)}, {v(t2)}, {v(t3)}")
    A(f"s_and_b32 {s(sT0)}, {s(sW)}, 1")
    A(f"s_lshl_b32 {s(sT0)}, {s(sT0)}, 1")
    A(f"v_add_u32 {v(t2)}, {s(sT0)}, {v(t2)}")
    A(f"v_and_b32 {v(t2)}, 15, {v(t2)}")
    A(f"v_lshl_add_u32 {v(t2)}, {v(kq_)}, 4, {v(t2)}")
    A(f"v_lshlrev_b32 {v(t2)}, 4, {v(t2)}")
    A(f"s_lshr_b32 {s(sT0)}, {s(sW)}, 1")
    A(f"s_lshl_b32 {s(sT0)}, {s(sT0)}, 10")
    A(f"s_add_u32 {s(sT0)}, {s(sT0)}, {L_O}")
    A(f"v_add_u32 {v(vOW)}, {s(sT0)}, {v(t2)}")
    A(f"v_lshlrev_b32 {v(t3)}, 3, {v(L)}"); A(f"v_and_b32 {v(t3)}, 0x1f0, {v(t3)}"); A(f"v_add_u32 {v(t3)}, {L_MISC + 512}, {v(t3)}")
    A(f"v_and_b32 {v(t2)}, 8, {v(L)}")
    A(f"v_cmp_ne_u32 vcc, 0, {v(t2)}"); A("s_nop 1")
    A(f"v_cndmask_b32 {v(vOW)}, {v(vOW)}, {v(t3)}, vcc")
    A(f"v_lshrrev_b32 {v(t2)}, 2, {v(n_)}")
    A(f"s_lshl_b32 {s(sT0)}, {s(sW)}, 3")
    A(f"v_add_u32 {v(t2)}, {s(sT0)}, {v(t2)}")
    A(f"v_lshlrev_b32 {v(t2)}, 13, {v(t2)}")
    A(f"v_and_b32 {v(t3)}, 3, {v(n_)}")
    A(f"v_lshlrev_b32 {v(t3)}, 4, {v(t3)}")
    A(f"v_lshl_add_u32 {v(t3)}, {v(kq_)}, {11 if layB else 6}, {v(t3)}")
    A(f"s_lshl_b32 {s(sT0)}, {s(sH)}, {6 if layB else 8}")
    A(f"v_add3_u32 {v(vPS)}, {v(t2)}, {v(t3)}, {s(sT0)}")
    A(f"v_bfe_u32 {v(t2)}, {v(L)}, 4, 1")
    A(f"v_lshlrev_b32 {v(t2)}, 1, {v(t2)}")
    A(f"v_bfe_u32 {v(t3)}, {v(L)}, 2, 1")
    A(f"v_add_u32 {v(t2)}, {v(t2)}, {v(t3)}")
    A(f"v_lshlrev_b32 {v(t2)}, 4, {v(t2)}")
    A(f"v_and_b32 {v(t3)}, 3, {v(L)}")
    A(f"v_lshl_add_u32 {v(t2)}, {v(t3)}, 2, {v(t2)}")
    A(f"s_lshr_b32 {s(sT0)}, {s(sH)}, 2")
    A(f"s_lshl_b32 {s(sT0)}, {s(sT0)}, 10")
    A(f"s_and_b32 {s(sT1)}, {s(sH)}, 3")
    A(f"s_lshl_b32 {s(sT1)}, {s(sT1)}, 8")
    A(f"s_add_u32 {s(sT0)}, {s(sT0)}, {s(sT1)}")
    A(f"s_lshl_b32 {s(sT1)}, {s(sW)}, 6")
    A(f"s_add_u32 {s(sT0)}, {s(sT0)}, {s(sT1)}")
    A(f"v_add_u32 {v(vMS)}, {s(sT0)}, {v(t2)}")
    A(f"s_lshl_b32 {s(sT0)}, {s(sH)}, 8"); A(f"s_add_u32 {s(sT0)}, {s(sT0)}, 0x10000")
    A(f"v_lshlrev_b32 {v(t3)}, 2, {v(L)}"); A(f"v_add_u32 {v(t3)}, {s(sT0)}, {v(t3)}")
    A(f"v_and_b32 {v(t2)}, 0x28, {v(L)}")
    A(f"v_cmp_ne_u32 vcc, 0, {v(t2)}"); A("s_nop 1")
    A(f"v_cndmask_b32 {v(vMS)}, {v(vMS)}, {v(t3)}, vcc")
    A(f"v_lshrrev_b32 {v(t2)}, 2, {v(n_)}")
    A(f"v_lshlrev_b32 {v(t2)}, 1, {v(t2)}")
    A(f"v_and_b32 {v(t3)}, 1, {v(n_)}")
    A(f"v_add_u32 {v(t2)}, {v(t2)}, {v(t3)}")
    A(f"v_lshlrev_b32 {v(t2)}, 4, {v(t2)}")
    A(f"v_lshl_add_u32 {v(t2)}, {v(kq_)}, 7, {v(t2)}")
    A(f"s_lshl_b32 {s(sT0)}, {s(sW)}, 9")
    A(f"v_add_u32 {v(vKM)}, {s(sT0)}, {v(t2)}")
    A(f"v_lshlrev_b32 {v(t2)}, 2, {v(L)}")
    A(f"s_lshl_b32 {s(sT0)}, {s(sW)}, 9")
    A(f"v_add_u32 {v(vVM)}, {s(sT0)}, {v(t2)}")
    A(f"v_and_b32 {v(t2)}, 7, {v(n_)}")
    for jj in range(4):
        A(f"v_mov_b32 {v(vSEL+jj)}, 0")
        A(f"v_mov_b32 {v(t3)}, 0x3f80")
        A(f"v_cmp_eq_u32 vcc, {2*jj}, {v(t2)}")
        A("s_nop 1")
        A(f"v_cndmask_b32 {v(vSEL+jj)}, {v(vSEL+jj)}, {v(t3)}, vcc")
        A(f"v_mov_b32 {v(t3)}, 0x3f800000")
        A(f"v_cmp_eq_u32 vcc, {2*jj+1}, {v(t2)}")
        A("s_nop 1")
        A(f"v_cndmask_b32 {v(vSEL+jj)}, {v(vSEL+jj)}, {v(t3)}, vcc")
        A(f"v_mov_b32 {v(vONE+jj)}, 0x3f803f80")
    A(f"s_mov_b32 {s(sM33)}, 0x33333333"); A(f"s_mov_b32 {s(sM33+1)}, 0x33333333")
    A(f"s_mov_b32 {s(sMLO)}, 0x00ff00ff"); A(f"s_mov_b32 {s(sMLO+1)}, 0x00ff00ff")
    A(f"s_mov_b32 {s(sMPUB)}, 0x00ff00ff"); A(f"s_mov_b32 {s(sMPUB+1)}, 0")

vD1, vD2, vT1, vT1b, vT2, vT2b, vT1h, vT1bh, vT2h, vT2bh = range(106, 116)
def first_issue(A, order='QKVO', ldflag=''):
    L, t1, t2, t3, n_, kq_ = 100, 101, 102, 103, 104, 105
    A(f"v_mov_b32 {v(L)}, v0")
    A(f"v_and_b32 {v(n_)}, 15, v0")
    A(f"v_lshrrev_b32 {v(kq_)}, 4, v0")
    A(f"v_lshrrev_b32 {v(t1)}, 5, {v(L)}")
    A(f"v_lshlrev_b32 {v(t1)}, 1, {v(t1)}")
    A(f"s_lshl_b32 {s(sT0)}, {s(sW)}, 2")
    A(f"v_or_b32 {v(t1)}, {s(sT0)}, {v(t1)}")
    A(f"v_xor_b32 {v(t1)}, {v(t1)}, {v(n_)}")
    A(f"v_lshlrev_b32 {v(t1)}, 4, {v(t1)}")
    A(f"s_lshl_b32 {s(sT0)}, {s(sW)}, 4")
    A(f"v_add_u32 {v(t2)}, {s(sT0)}, {v(kq_)}")
    A(f"v_lshlrev_b32 {v(t2)}, 13, {v(t2)}")
    A(f"s_lshl_b32 {s(sT0)}, {s(sH)}, 8")
    A(f"v_add3_u32 {v(vD1)}, {v(t1)}, {v(t2)}, {s(sT0)}")
    A(f"s_lshl_b32 {s(sT1)}, {s(sW)}, 12")
    wptr = {'Q': sWQ, 'K': sWK, 'V': sWV}
    ch = make_chunks(order)
    for c in range(7):
        m, x = ch[c]
        assert m != 'O'
        for i in range(4):
            add64(A, sT2, wptr[m], (64*x + 4*i)*8192)
            A(f"s_add_u32 m0, {s(sT1)}, {SLOTS[c]*16384 + i*1024}")
            A("s_nop 0") if False else None
            A(f"s_nop 0")
            A(f"global_load_lds_dwordx4 {v(vD1)}, {s(sT2,2)} {ldflag}")

def loader_addresses(A):
    L, t1, t2, t3, n_, kq_ = 100, 101, 102, 103, 104, 105
    A(f"s_and_b32 {s(sT0)}, {s(sW)}, 1")
    A(f"s_lshl_b32 {s(sT0)}, {s(sT0)}, 1")
    A(f"s_lshr_b32 {s(sT1)}, {s(sW)}, 1")
    A(f"s_lshl_b32 {s(sT1)}, {s(sT1)}, 3")
    A(f"s_or_b32 {s(sT0)}, {s(sT0)}, {s(sT1)}")
    A(f"v_and_b32 {v(t1)}, 1, {v(kq_)}")
    A(f"v_lshlrev_b32 {v(t1)}, 2, {v(t1)}")
    A(f"v_or_b32 {v(t1)}, {s(sT0)}, {v(t1)}")
    A(f"v_xor_b32 {v(t1)}, {v(t1)}, {v(n_)}")
    A(f"v_lshrrev_b32 {v(t2)}, 2, {v(t1)}")
    A(f"v_lshlrev_b32 {v(t2)}, 8, {v(t2)}")
    A(f"v_and_b32 {v(t1)}, 3, {v(t1)}")
    A(f"v_lshl_add_u32 {v(t1)}, {v(t1)}, 4, {v(t2)}")
    A(f"s_lshl_b32 {s(sT0)}, {s(sW)}, 4")
    A(f"v_add_u32 {v(t2)}, {s(sT0)}, {v(kq_)}")
    A(f"v_lshlrev_b32 {v(t2)}, 10, {v(t2)}")
    A(f"s_lshl_b32 {s(sT0)}, {s(sH)}, 17")
    A(f"v_add3_u32 {v(vD2)}, {v(t1)}, {v(t2)}, {s(sT0)}")
    A(f"v_lshrrev_b32 {v(t1)}, 5, {v(L)}")
    A(f"v_bfe_u32 {v(t2)}, {v(L)}, 4, 1")
    A(f"v_lshlrev_b32 {v(t1)}, 2, {v(t1)}")
    A(f"v_lshl_add_u32 {v(t1)}, {v(t2)}, 1, {v(t1)}")
    A(f"v_bfe_u32 {v(t3)}, {v(L)}, 2, 2")
    A(f"v_lshl_add_u32 {v(t1)}, {v(t3)}, 4, {v(t1)}")
    A(f"v_lshlrev_b32 {v(t1)}, 8, {v(t1)}")
    A(f"v_lshlrev_b32 {v(t2)}, 1, {v(t2)}")
    A(f"v_lshl_add_u32 {v(t2)}, {v(t3)}, 2, {v(t2)}")
    A(f"v_bfe_u32 {v(t3)}, {v(L)}, 1, 1")
    A(f"s_lshl_b32 {s(sT0)}, {s(sW)}, 2")
    A(f"v_or_b32 {v(t3)}, {s(sT0)}, {v(t3)}")
    A(f"v_xor_b32 {v(t2)}, {v(t2)}, {v(t3)}")
    A(f"v_lshl_add_u32 {v(t1)}, {v(t2)}, 4, {v(t1)}")
    A(f"v_and_b32 {v(t3)}, 1, {v(L)}")
    A(f"v_lshl_add_u32 {v(vT1)}, {v(t3)}, 3, {v(t1)}")
    A(f"v_xor_b32 {v(vT1b)}, 32, {v(vT1)}")
    A(f"v_lshrrev_b32 {v(t1)}, 5, {v(L)}")
    A(f"v_bfe_u32 {v(t2)}, {v(L)}, 4, 1")
    A(f"v_lshlrev_b32 {v(t1)}, 2, {v(t1)}")
    A(f"v_lshl_add_u32 {v(t1)}, {v(t2)}, 4, {v(t1)}")
    A(f"v_bfe_u32 {v(t3)}, {v(L)}, 2, 1")
    A(f"v_add_u32 {v(t1)}, {v(t1)}, {v(t3)}")
    A(f"v_lshlrev_b32 {v(t2)}, 1, {v(t2)}")
    A(f"v_lshl_add_u32 {v(t2)}, {v(t3)}, 2, {v(t2)}")
    A(f"v_bfe_u32 {v(t3)}, {v(L)}, 3, 1")
    A(f"v_lshl_add_u32 {v(t1)}, {v(t3)}, 5, {v(t1)}")
    A(f"v_lshl_add_u32 {v(t2)}, {v(t3)}, 3, {v(t2)}")
    A(f"v_lshlrev_b32 {v(t1)}, 8, {v(t1)}")
    A(f"v_bfe_u32 {v(t3)}, {v(L)}, 1, 1")
    A(f"s_lshl_b32 {s(sT0)}, {s(sW)}, 2")
    A(f"v_or_b32 {v(t3)}, {s(sT0)}, {v(t3)}")
    A(f"v_xor_b32 {v(t2)}, {v(t2)}, {v(t3)}")
    A(f"v_lshl_add_u32 {v(t1)}, {v(t2)}, 4, {v(t1)}")
    A(f"v_and_b32 {v(t3)}, 1, {v(L)}")
    A(f"v_lshl_add_u32 {v(vT2)}, {v(t3)}, 3, {v(t1)}")
    A(f"v_xor_b32 {v(vT2b)}, 32, {v(vT2)}")
    for lo, hi in ((vT1, vT1h), (vT1b, vT1bh), (vT2, vT2h), (vT2b, vT2bh)):
        A(f"v_add_u32 {v(hi)}, 0x10000, {v(lo)}")

def make_chunks(order):
    c = []
    for m in order:
        if m == 'O': c += [('O', (0, Tp)) for Tp in range(4)]
        else: c += [(m, t) for t in range(8)]
    return c + [('O', (1, Tp)) for Tp in range(4)]
CHUNKS = make_chunks('QKVO')
SLOTS = [c % 8 for c in range(28)] + [4, 6, 0, 2]
ISSUE_AT = {c: c - 7 for c in range(7, 29)}
ISSUE_AT.update({29: 23, 30: 25, 31: 27})
PARK = 24
def loader(A, w, order='QKVO', progress=None, ldflag='', hooks=None):
    CHUNKS = make_chunks(order)
    wptr = {'Q': sWQ, 'K': sWK, 'V': sWV, 'O': sWO}
    issued = []
    def issue(c):
        m, x = CHUNKS[c]; slot = SLOTS[c]
        for i in range(4):
            if m == 'O': goff = (64*x[0] + 4*i)*1024 + 64*x[1]; vD = vD2
            else: goff = (64*x + 4*i)*8192; vD = vD1
            add64(A, sT2, wptr[m], goff)
            A(f"s_mov_b32 m0, {slot*16384 + w*4096 + i*1024}")
            A("s_nop 0")
            A(f"global_load_lds_dwordx4 {v(vD)}, {s(sT2,2)} {ldflag}")
        issued.append((c, 4))
    for c in range(7): issued.append((c, 4))
    issued.append(('init', 8))
    for c in range(32):
        m, x = CHUNKS[c]; slot = SLOTS[c]
        pos = [i for i, x_ in enumerate(issued) if x_[0] == c][0]
        after = sum(x_[1] for x_ in issued[pos+1:])
        A(f"s_waitcnt vmcnt({after})")
        A("s_barrier")
        for c2, at in ISSUE_AT.items():
            if at == c: issue(c2)
        if progress is not None and c == progress[0]: progress[1](A, w, issued)
        if hooks and c in hooks: hooks[c](A, w, issued)
        ores = (m == 'O' and x[0] == 1)
        for P in range(2):
            key = ('O', 2*x[1] + P, x[0]) if m == 'O' else (m, P, x)
            h = home(w, key)
            if m == 'O': base = [[vT2, vT2h], [vT2b, vT2bh]][P][slot >> 2]
            else: base = [[vT1, vT1h], [vT1b, vT1bh]][P][slot >> 2]
            for u in range(4):
                ro = (8*(u >> 1) + 2*(u & 1)) if m == 'O' else (8*(u >> 1) + (u & 1))
                off = (slot & 3)*16384 + ro*256
                if h is not None: dst = rstr(h, 2*u, 2)
                elif ores: dst = v((88, 116)[P] + 2*u, 2)
                else: dst = v(PARK + 8*res_index(w, key) + 2*u, 2)
                A(f"ds_read_b64_tr_b16 {dst}, {v(base)} offset:{off}")
        A("s_waitcnt lgkmcnt(0)")
        if ores:
            for P in range(2):
                off = res_index(w, ('O', 2*x[1] + P, 1))*2048
                A(f"ds_write_b128 {v(vRA)}, {v((88,116)[P],4)} offset:{off}")
                A(f"ds_write_b128 {v(vRA)}, {v((88,116)[P]+4,4)} offset:{off+1024}")
            A("s_waitcnt lgkmcnt(0)")
    A("s_barrier")
    for i in range(8):
        A(f"ds_write_b128 {v(vRA)}, {v(PARK+8*i,4)} offset:{i*2048}")
        A(f"ds_write_b128 {v(vRA)}, {v(PARK+8*i+4,4)} offset:{i*2048+1024}")
    A("s_waitcnt lgkmcnt(0)")

_absn = 0
class Stamp:
    def __init__(self, on): self.on = on or []; self.n = 0
    def __call__(self, A, name):
        if name not in self.on: return
        k = self.on.index(name)
        if self.on[0] == 'ABS':
            global _absn
            _absn += 1
            lab = f"L_abs_{_absn}"
            A(f"s_cmp_eq_u32 {s(sSTEP)}, {30 + (1 if name in ('pollR', 'red', 'adv') else 0)}")
            A(f"s_cbranch_scc0 {lab}")
            A(f"s_memrealtime {s(sTS,2)}"); A("s_waitcnt lgkmcnt(0)"); A(f"s_mov_b32 {s(sTS+4+k)}, {s(sTS)}")
            A.label(lab)
            return
        A(f"s_memtime {s(sTS,2)}")
        A("s_waitcnt lgkmcnt(0)")
        A(f"s_sub_u32 {s(sT0)}, {s(sTS)}, {s(sTS+2)}")
        A(f"s_add_u32 {s(sTS+4+k)}, {s(sTS+4+k)}, {s(sT0)}")
        A(f"s_mov_b32 {s(sTS+2)}, {s(sTS)}")

def own_stage(w):
    t0, t1 = own_t(w)
    blocks = [vMA + 8*u for u in range(4) if u != w][:2]
    return {('Q',0,t0): blocks[0], ('Q',1,t0): blocks[1], ('Q',0,t1): 80, ('Q',1,t1): 88,
            ('K',0,t0): 96, ('K',1,t0): 104, ('K',0,t1): 112, ('K',1,t1): 120}
def stage_own(A, w):
    for key, dst in own_stage(w).items(): res_read(A, w, key, dst)
ACC = {('Q',0): vQ0, ('Q',1): vQ1, ('K',0): vK0, ('K',1): vK1, ('V',0): vV0, ('V',1): vV1}

def delay(A, n):
    while n > 0:
        k = min(n, 4); A(f"s_nop {4*k-1}"); n -= k

def step_loop(A, w, pfx, st_team='', stamps=None, spin_max=400000, slR=0, slG=0, nsteps=64, nstage_pre=4, dR=(0, 0), dG=(0, 0), dbl=True):
    st_pub = 'sc1'
    T = Stamp(stamps)
    lb = f"{pfx}W{w}"
    FAIL = f"L_{pfx}_fail"
    t0, t1 = own_t(w)
    oth = other_t(w)
    stg = own_stage(w)
    ostage = {}
    side = []
    def gap():
        if side:
            for x in side.pop(0): A(x)
    def flush():
        while side: gap()
    def bfrag(key):
        h = home(w, key)
        if h is not None: return rstr(h)
        if key in stg: return v(stg[key], 8)
        return v(ostage[key], 8)
    def smf(m, P, t, g=True):
        A(f"v_smfmac_f32_16x16x64_bf16 {v(ACC[(m,P)],4)}, {v(vMA+4*t,4)}, {bfrag((m,P,t))}, {v(vIDX)}")
        if g: gap()
    vq = [(P, t) for t in (t0, t1) for P in range(2)] + [(P, t) for t in oth for P in range(2)]
    def vfill(n, g=True):
        for _ in range(n):
            if vq: P, t = vq.pop(0); smf('V', P, t, g)
    def add2(r):
        A(f"v_add_f32 {v(r)}, {v(r)}, {v(r+2)}"); A(f"v_add_f32 {v(r+1)}, {v(r+1)}, {v(r+3)}")
    def a64(dst, src, imm): return [f"s_add_u32 {s(dst)}, {s(src)}, {hex(imm)}", f"s_addc_u32 {s(dst+1)}, {s(src+1)}, 0"]
    a0, b0 = vMA+4*t0, vMA+4*t1
    GB = [vMA + 8*u for u in range(4) if u != w][2]
    def gloads(dst=None):
        d0, d1 = (vMA+4*t0, vMA+4*t1) if dst is None else (dst, dst+4)
        A(f"global_load_dwordx4 {v(d0,4)}, {v(vL16)}, {s(sGAT,2)} sc1")
        A(f"global_load_dwordx4 {v(d1,4)}, {v(vL16)}, {s(sGAT,2)} offset:1024 sc1")
    A.label(f"L_pollG_{lb}")
    gloads()
    A(f"s_add_u32 {s(sSPIN)}, {s(sSPIN)}, 1")
    A(f"s_cmp_gt_u32 {s(sSPIN)}, {spin_max}")
    A(f"s_cbranch_scc1 {FAIL}")
    A("s_waitcnt vmcnt(0)")
    A(f"v_max_u32 {v(vDUM)}, {v(a0)}, {v(b0)}")
    A(f"v_cmp_eq_u32 vcc, -1, {v(vDUM)}")
    A(f"s_cbranch_vccnz L_pollG_{lb}")
    A.label(f"L_entry_{lb}")
    T(A, 'gather')
    A(f"ds_write_b128 {v(vC)}, {v(vMA+4*t0,4)} offset:{t0*1024}")
    A(f"ds_write_b128 {v(vC)}, {v(vMA+4*t1,4)} offset:{t1*1024}")
    A.label(f"L_entry2_{lb}")
    smf('Q', 0, t0); smf('Q', 1, t0); smf('Q', 0, t1); smf('Q', 1, t1); smf('K', 0, t0); smf('K', 1, t0)
    A("s_waitcnt vmcnt(0) lgkmcnt(0)")
    A("s_barrier")
    T(A, 'B1')
    for t in oth: side.append([f"ds_read_b128 {v(vMA+4*t,4)}, {v(vC)} offset:{t*1024}"])
    gap(); gap()
    smf('K', 0, t1); smf('K', 1, t1); vfill(2)
    assert not side
    KX = 80
    side.append([f"s_mov_b32 m0, {L_VX + w*2048}", f"v_mov_b32 {v(vDUM)}, -1"])
    side.append([f"global_load_lds_dwordx4 {v(vL16)}, {s(sVX,2)} sc1"])
    vfill(2)
    kxq = [(U, ks) for ks in range(4) for U in range(2)]
    extra = [[f"global_load_lds_dwordx4 {v(vL16)}, {s(sVX,2)} offset:1024 sc1"],
             [f"global_store_dword {v(vMS)}, {v(vDUM)}, {s(sPOI,2)} {st_team}"],
             [f"buffer_load_dword {v(vFLG)}, off, {s(sSRD,4)}, {s(sKF)} sc1"],
             a64(sT2, sVX, 32*8192) + [f"global_load_dword {v(vDUM)}, {v(vWU)}, {s(sT2,2)} sc1"]]
    nlds = 0
    for i, t in enumerate(oth):
        A(f"s_waitcnt lgkmcnt({5 - i + nlds})")
        for P in range(2):
            smf('Q', P, t, g=False)
            if kxq:
                U, ks = kxq.pop(0); A(f"ds_read_b128 {v(KX+16*U+4*ks,4)}, {v(vC)} offset:{L_KX-L_MEM + U*4096 + ks*1024}"); nlds += 1
            elif extra:
                for x in extra.pop(0): A(x)
    assert not kxq and not extra
    T(A, 'q')
    krest = [(P, t) for t in oth for P in range(2)]
    def kfill(n, g=True):
        for _ in range(n):
            P, t = krest.pop(0); smf('K', P, t, g)
    kfill(2)
    A("s_nop 0")
    add2(vQ0)
    kfill(1)
    add2(vQ1)
    A(f"v_cvt_pk_bf16_f32 {v(vQ0+2)}, {v(vQ0)}, {v(vQ1)}")
    A(f"v_cvt_pk_bf16_f32 {v(vQ0+3)}, {v(vQ0+1)}, {v(vQ1+1)}")
    A(f"ds_write_b32 {v(vQWA)}, {v(vQ0+2)}")
    A(f"ds_write_b32 {v(vQWB)}, {v(vQ0+3)}")
    nmf = 0
    if w == 0:
        side.append([f"v_mov_b32 {v(vQ0)}, 1"])
        side.append([f"buffer_store_dword {v(vQ0)}, off, {s(sSRD,4)}, {s(sMF)} sc1"]); nmf = 1
    side.append([f"s_mov_b32 m0, {L_KX + w*2048}"])
    kfill(6)
    flush()
    A("s_waitcnt lgkmcnt(0)")
    A("s_barrier")
    QF = 112
    for ks in range(4): side.append([f"ds_read_b128 {v(QF+4*ks,4)}, {v(vQR)} offset:{ks*1024}"])
    gap()
    kfill(3)
    assert not krest and not side
    T(A, 'k')
    side.append([f"global_load_lds_dwordx4 {v(vL16)}, {s(sKX,2)} sc1"])
    side.append([f"global_load_lds_dwordx4 {v(vL16)}, {s(sKX,2)} offset:1024 sc1"])
    vfill(2)
    A("s_nop 0")
    add2(vK0); add2(vK1)
    A(f"v_cvt_pk_bf16_f32 {v(vK0+2)}, {v(vK0)}, {v(vK1)}")
    A(f"v_cvt_pk_bf16_f32 {v(vK0+3)}, {v(vK0+1)}, {v(vK1+1)}")
    A("s_waitcnt lgkmcnt(0)")
    A(f"ds_write_b32 {v(vQWA)}, {v(vK0+2)} offset:128")
    A(f"ds_write_b32 {v(vQWB)}, {v(vK0+3)} offset:128")
    S1, S2, S0 = 56, 60, 64
    for ks in range(4):
        c = (lambda r: '0' if ks == 0 else v(r,4))
        A(f"v_mfma_f32_16x16x32_bf16 {v(S1,4)}, {v(KX+4*ks,4)}, {v(QF+4*ks,4)}, {c(S1)}")
        A(f"v_mfma_f32_16x16x32_bf16 {v(S2,4)}, {v(KX+16+4*ks,4)}, {v(QF+4*ks,4)}, {c(S2)}")
    A(f"s_waitcnt vmcnt({5 + nmf}) lgkmcnt(0)")
    A("s_barrier")
    T(A, 'B2b')
    KD = 80
    VX = 104
    for ks in range(4): side.append([f"ds_read_b128 {v(KD+4*ks,4)}, {v(vKD)} offset:{ks*1024}"])
    side.append([f"ds_read_b128 {v(VX,4)}, {v(vC)} offset:{L_VX-L_MEM + (2*w)*1024}"])
    side.append([f"ds_read_b128 {v(VX+4,4)}, {v(vC)} offset:{L_VX-L_MEM + (2*w+1)*1024}"])
    gap(); gap()
    vfill(5)
    assert not side
    for ks in range(4):
        A(f"s_waitcnt lgkmcnt({5-ks})")
        A(f"v_mfma_f32_16x16x32_bf16 {v(S0,4)}, {v(KD+4*ks,4)}, {v(QF+4*ks,4)}, {'0' if ks == 0 else v(S0,4)}")
    side.append([f"global_store_dwordx4 {v(vKM)}, {v(KD+4*w,4)}, {s(sKM,2)} {st_pub}"])
    vfill(16)
    assert not vq and not side
    T(A, 'S')
    for Tt in range(4):
        ostage[('O', Tt, 1)] = vMA + 8*Tt
    oq = [(('O', Tt, 1), vMA + 8*Tt) for Tt in range(4)]
    Mx, Tm = 68, 69
    A(f"v_max3_f32 {v(Mx)}, {v(S1)}, {v(S1+1)}, {v(S1+2)}")
    A(f"v_max3_f32 {v(Mx)}, {v(Mx)}, {v(S1+3)}, {v(S2)}")
    A(f"v_max3_f32 {v(Mx)}, {v(Mx)}, {v(S2+1)}, {v(S2+2)}")
    A(f"v_max3_f32 {v(Mx)}, {v(Mx)}, {v(S2+3)}, {v(S0)}")
    A(f"v_max_f32 {v(Mx)}, {v(Mx)}, {v(S0+1)}")
    A(f"v_mov_b32 {v(Tm)}, {v(Mx)}")
    key, dst = oq.pop(0); res_read(A, w, key, dst)
    A(f"v_permlane32_swap_b32 {v(Mx)}, {v(Tm)}")
    A(f"v_max_f32 {v(Mx)}, {v(Mx)}, {v(Tm)}")
    A(f"v_mov_b32 {v(Tm)}, {v(Mx)}")
    key, dst = oq.pop(0); res_read(A, w, key, dst)
    A(f"v_permlane16_swap_b32 {v(Mx)}, {v(Tm)}")
    A(f"v_max_f32 {v(Mx)}, {v(Mx)}, {v(Tm)}")
    A(f"v_mul_f32 {v(Mx)}, {s(sC)}, {v(Mx)}")
    for r in (S1, S1+2, S2, S2+2, S0):
        A(f"v_pk_fma_f32 {v(r,2)}, {v(r,2)}, {s(sC,2)}, {v(Mx,2)} op_sel_hi:[1,0,0] neg_lo:[0,0,1] neg_hi:[0,0,1]")
    for r in (S1, S1+1, S1+2, S1+3, S2, S2+1, S2+2, S2+3, S0, S0+1):
        A(f"v_exp_f32 {v(r)}, {v(r)}")
    T(A, 'exp')
    Px, Pm = 96, 100
    VM0, VM1 = 112, 114
    A(f"v_cvt_pk_bf16_f32 {v(Px)}, {v(S1)}, {v(S1+1)}")
    A(f"v_cvt_pk_bf16_f32 {v(Px+1)}, {v(S1+2)}, {v(S1+3)}")
    A(f"v_cvt_pk_bf16_f32 {v(Px+2)}, {v(S2)}, {v(S2+1)}")
    A(f"v_cvt_pk_bf16_f32 {v(Px+3)}, {v(S2+2)}, {v(S2+3)}")
    A(f"v_cvt_pk_bf16_f32 {v(Pm)}, {v(S0)}, {v(S0+1)}")
    A(f"v_mov_b32 {v(Pm+1)}, 0")
    O0, O1, LL = 80, 84, 88
    A("s_waitcnt lgkmcnt(4)")
    A(f"v_mfma_f32_16x16x32_bf16 {v(LL,4)}, {v(vONE,4)}, {v(Px,4)}, 0")
    add2(vV0)
    A(f"v_mfma_f32_16x16x32_bf16 {v(O0,4)}, {v(VX,4)}, {v(Px,4)}, 0")
    add2(vV1)
    A(f"v_mfma_f32_16x16x32_bf16 {v(O1,4)}, {v(VX+4,4)}, {v(Px,4)}, 0")
    A(f"v_cvt_pk_bf16_f32 {v(VM0)}, {v(vV0)}, {v(vV0+1)}")
    A(f"v_cvt_pk_bf16_f32 {v(VM1)}, {v(vV1)}, {v(vV1+1)}")
    A(f"v_mov_b32 {v(VM0+1)}, 0")
    A(f"v_mov_b32 {v(VM1+1)}, 0")
    A(f"v_mfma_f32_16x16x16_bf16 {v(LL,4)}, {v(vONE,2)}, {v(Pm,2)}, {v(LL,4)}")
    key, dst = oq.pop(0); res_read(A, w, key, dst)
    A(f"v_mfma_f32_16x16x16_bf16 {v(O0,4)}, {v(VM0,2)}, {v(Pm,2)}, {v(O0,4)}")
    key, dst = oq.pop(0); res_read(A, w, key, dst)
    A(f"v_mfma_f32_16x16x16_bf16 {v(O1,4)}, {v(VM1,2)}, {v(Pm,2)}, {v(O1,4)}")
    for Tt in (4, 5, 6):
        ostage[('O', Tt, 1)] = 56 + 8*(Tt-4)
    res_read(A, w, ('O', 4, 1), 56)
    A(f"global_store_dword {v(vVM)}, {v(VM0)}, {s(sVM,2)} {st_pub}")
    A(f"global_store_dword {v(vVM)}, {v(VM1)}, {s(sVM,2)} offset:256 {st_pub}")
    A(f"s_cmp_eq_u32 {s(sSTEP)}, {nsteps-1}")
    A(f"s_cbranch_scc1 L_last_{lb}")
    RC = 92
    A(f"v_rcp_f32 {v(RC)}, {v(LL)}")
    res_read(A, w, ('O', 5, 1), 64)
    for r in (O0, O0+2, O1, O1+2):
        A(f"v_pk_mul_f32 {v(r,2)}, {v(r,2)}, {v(RC,2)} op_sel_hi:[1,0]")
    OC = 120
    A(f"v_cvt_pk_bf16_f32 {v(OC)}, {v(O0)}, {v(O0+1)}")
    A(f"v_cvt_pk_bf16_f32 {v(OC+1)}, {v(O0+2)}, {v(O0+3)}")
    A(f"v_cvt_pk_bf16_f32 {v(OC+2)}, {v(O1)}, {v(O1+1)}")
    A(f"v_cvt_pk_bf16_f32 {v(OC+3)}, {v(O1+2)}, {v(O1+3)}")
    A(f"ds_write_b128 {v(vOW)}, {v(OC,4)}")
    T(A, 'PV')
    res_read(A, w, ('O', 6, 1), 72)
    WA = 80
    zero_regs(A, WA, 32)
    A("s_waitcnt lgkmcnt(0)")
    A("s_barrier")
    T(A, 'B3')
    OA = 112
    A(f"ds_read_b128 {v(OA,4)}, {v(vC)} offset:{L_O-L_MEM}")
    A(f"ds_read_b128 {v(OA+4,4)}, {v(vC)} offset:{L_O-L_MEM+1024}")
    for x in a64(sKX, sKX, 32*8192) + a64(sVX, sVX, 32*8192) + a64(sKM, sKM, 32*2048) + a64(sVM, sVM, 32*2048): A(x)
    A("s_waitcnt lgkmcnt(0)")
    CH = 120
    ostage[('O', 7, 1)] = vMA
    def post(Tt, h=None):
        if h in (None, 0): A(f"v_add_f32 {v(WA+4*Tt)}, {v(WA+4*Tt)}, {v(WA+4*Tt+2)}")
        if h in (None, 1): A(f"v_add_f32 {v(WA+4*Tt+1)}, {v(WA+4*Tt+1)}, {v(WA+4*Tt+3)}")
    def post2(Tt): A(f"v_cvt_pk_bf16_f32 {v(CH+Tt)}, {v(WA+4*Tt)}, {v(WA+4*Tt+1)}")
    def store(a_):
        A(f"v_and_or_b32 {v(CH+4*a_)}, {v(CH+4*a_)}, -2, {s(sTAG)}")
        A(f"global_store_dwordx4 {v(vPS)}, {v(CH+4*a_,4)}, {s(sPSA if a_ == 0 else sPSB,2)} {st_team}")
    seq = [(Tt, ks2) for Tt in range(8) for ks2 in range(2)]
    for i, (Tt, ks2) in enumerate(seq):
        if (Tt, ks2) == (7, 1): A("s_waitcnt lgkmcnt(0)")
        A(f"v_smfmac_f32_16x16x64_bf16 {v(WA+4*Tt,4)}, {v(OA+4*ks2,4)}, {bfrag(('O',Tt,ks2))}, {v(vIDX)}")
        if i == 1: res_read(A, w, ('O', 7, 1), vMA)
        if i >= 4 and i % 2 == 0: post((i-4)//2, 0)
        if i >= 5 and i % 2 == 1: post((i-5)//2, 1); post2((i-5)//2)
        if i == 12: store(0)
    A("s_nop 1")
    post(6)
    post2(6)
    A("s_nop 2")
    post(7)
    post2(7)
    store(1)
    T(A, 'Wo')
    RL, RA, RB = 56, 64, 68
    items = list(own_stage(w).items())
    for key, dst in items[:nstage_pre]: res_read(A, w, key, dst)
    if slR: A(f"s_sleep {slR}")
    delay(A, dR[0])
    def rloads(dst=RL):
        A(f"global_load_dwordx4 {v(dst,4)}, {v(vL16)}, {s(sPLD,2)} sc1")
        A(f"global_load_dwordx4 {v(dst+4,4)}, {v(vL16)}, {s(sPLD,2)} offset:1024 sc1")
    def rcheck(src, target, cont=None):
        A(f"v_mfma_f32_16x16x32_bf16 {v(RA,4)}, {v(vSEL,4)}, {v(src,4)}, 0")
        A(f"v_bitop3_b32 {v(vDUM)}, {v(src)}, {v(src+4)}, {s(sTAG)} bitop3:0x7e")
        A(f"v_mfma_f32_16x16x32_bf16 {v(RA,4)}, {v(vSEL,4)}, {v(src+4,4)}, {v(RA,4)}")
        A(f"v_and_b32 {v(vDUM)}, 1, {v(vDUM)}")
        A(f"v_cmp_ne_u32 vcc, 0, {v(vDUM)}")
    rloads()
    for key, dst in items[nstage_pre:]: res_read(A, w, key, dst)
    A(f"s_add_u32 {s(sSTEP)}, {s(sSTEP)}, 1")
    A(f"s_mov_b32 {s(sPOI)}, {s(sGAT)}"); A(f"s_mov_b32 {s(sPOI+1)}, {s(sGAT+1)}")
    A(f"s_sub_u32 {s(sPOI)}, {s(sPOI)}, {w*2048}"); A(f"s_subb_u32 {s(sPOI+1)}, {s(sPOI+1)}, 0")
    for x in a64(sGAT, sPUB, w*2048): A(x)
    if dbl:
        delay(A, dR[1])
        rloads(RB)
        A("s_waitcnt vmcnt(2)")
        rcheck(RL, None)
        A(f"s_cbranch_vccz L_okR_{lb}")
        A("s_waitcnt vmcnt(0)")
        rcheck(RB, None)
        A(f"s_cbranch_vccz L_okR_{lb}")
    else:
        A(f"s_branch L_chkR_{lb}")
    A.label(f"L_pollR_{lb}")
    rloads()
    A(f"s_add_u32 {s(sSPIN)}, {s(sSPIN)}, 1")
    A(f"s_cmp_gt_u32 {s(sSPIN)}, {spin_max}")
    A(f"s_cbranch_scc1 {FAIL}")
    A.label(f"L_chkR_{lb}")
    A("s_waitcnt vmcnt(0)")
    rcheck(RL, None)
    A(f"s_cbranch_vccnz L_pollR_{lb}")
    A.label(f"L_okR_{lb}")
    T(A, 'pollR')
    A("s_nop 4")
    x0, x1, x2, x3 = RA, RA+1, RA+2, RA+3
    dp = "row_mask:0xf"
    A(f"v_add_f32_dpp {v(x0)}, {v(x0)}, {v(x0)} row_ror:8 {dp} bank_mask:0x3")
    A(f"v_add_f32_dpp {v(x1)}, {v(x1)}, {v(x1)} row_ror:8 {dp} bank_mask:0x3")
    A(f"v_add_f32_dpp {v(x0)}, {v(x2)}, {v(x2)} row_ror:8 {dp} bank_mask:0xc")
    A(f"v_add_f32_dpp {v(x1)}, {v(x3)}, {v(x3)} row_ror:8 {dp} bank_mask:0xc")
    A("s_nop 0")
    A(f"v_add_f32_dpp {v(x0)}, {v(x0)}, {v(x0)} row_shl:4 {dp} bank_mask:0x5")
    A(f"v_add_f32_dpp {v(x0)}, {v(x1)}, {v(x1)} row_shr:4 {dp} bank_mask:0xa")
    A("s_nop 1")
    A(f"v_mov_b32_dpp {v(x1)}, {v(x0)} row_ror:8 {dp} bank_mask:0xf")
    A(f"v_cvt_pk_bf16_f32 {v(x0)}, {v(x0)}, {v(x1)}")
    A(f"v_min_u32 {v(x0)}, -2, {v(x0)}")
    A(f"global_store_dword {v(vMS)}, {v(x0)}, {s(sPUB,2)} {st_team}")
    T(A, 'red')
    def window2a():
        A(f"v_readfirstlane_b32 {s(sT3)}, {v(vFLG)}")
        A(f"s_add_u32 {s(sT0)}, {s(sSTEP)}, 1")
        A(f"s_and_b32 {s(sT0)}, {s(sT0)}, 3")
        A(f"s_lshl_b32 {s(sT0)}, {s(sT0)}, 13")
        A(f"s_add_u32 {s(sT0)}, {s(sT0)}, {hex(WS_MEM)}")
        A(f"s_add_u32 {s(sPUB)}, {s(sWS)}, {s(sT0)}"); A(f"s_addc_u32 {s(sPUB+1)}, {s(sWS+1)}, 0")
        part_bases(A, w)
        A(f"s_bfe_u32 {s(sTAG)}, {s(sSTEP)}, 0x10001")
        A(f"s_mov_b32 {s(sSPIN)}, 0")
        A(f"s_add_u32 {s(sKF)}, {s(sKF)}, 128"); A(f"s_add_u32 {s(sMF)}, {s(sMF)}, 128")
    window2a()
    A(f"s_cmp_lg_u32 {s(sT3)}, 0")
    A(f"s_cbranch_scc1 L_kvok_{lb}")
    A(f"s_add_u32 {s(sT0)}, {s(sSTEP)}, 1")
    A(f"s_cmp_lt_u32 {s(sT0)}, {nsteps}")
    A(f"s_cbranch_scc0 L_kvok_{lb}")
    A(f"s_sub_u32 {s(sT0)}, {s(sKF)}, 128")
    A.label(f"L_kvspin_{lb}")
    A(f"buffer_load_dword {v(vFLG)}, off, {s(sSRD,4)}, {s(sT0)} sc1")
    A(f"s_add_u32 {s(sSPIN)}, {s(sSPIN)}, 1")
    A(f"s_cmp_gt_u32 {s(sSPIN)}, {spin_max}")
    A(f"s_cbranch_scc1 {FAIL}")
    A("s_waitcnt vmcnt(0)")
    A(f"v_readfirstlane_b32 {s(sT3)}, {v(vFLG)}")
    A("s_nop 3")
    A(f"s_cmp_lg_u32 {s(sT3)}, 0")
    A(f"s_cbranch_scc0 L_kvspin_{lb}")
    A(f"s_mov_b32 {s(sSPIN)}, 0")
    A.label(f"L_kvok_{lb}")
    if slG: A(f"s_sleep {slG}")
    delay(A, dG[0])
    gloads()
    A("s_waitcnt vmcnt(3)")
    zero_regs(A, 56, 24)
    A("s_waitcnt lgkmcnt(0)")
    T(A, 'adv')
    if dbl:
        delay(A, dG[1])
        gloads(GB)
        A("s_waitcnt vmcnt(2)")
        A(f"v_max_u32 {v(vDUM)}, {v(a0)}, {v(b0)}")
        A(f"v_cmp_eq_u32 vcc, -1, {v(vDUM)}")
        A(f"s_cbranch_vccz L_entry_{lb}")
        A("s_waitcnt vmcnt(0)")
        A(f"v_max_u32 {v(vDUM)}, {v(GB)}, {v(GB+4)}")
        A(f"v_cmp_eq_u32 vcc, -1, {v(vDUM)}")
        A(f"s_cbranch_vccnz L_pollG_{lb}")
        A(f"ds_write_b128 {v(vC)}, {v(GB,4)} offset:{t0*1024}")
        A(f"ds_write_b128 {v(vC)}, {v(GB+4,4)} offset:{t1*1024}")
        for i in range(0, 8, 2): A(f"v_mov_b64 {v(a0+i,2)}, {v(GB+i,2)}")
        A("s_nop 0")
        A(f"s_branch L_entry2_{lb}")
    else:
        A("s_waitcnt vmcnt(0)")
        A(f"v_max_u32 {v(vDUM)}, {v(a0)}, {v(b0)}")
        A(f"v_cmp_eq_u32 vcc, -1, {v(vDUM)}")
        A(f"s_cbranch_vccz L_entry_{lb}")
        A(f"s_branch L_pollG_{lb}")
    A.label(f"L_last_{lb}")
    A("s_waitcnt vmcnt(0)")
    A("s_barrier")
    if w == 0:
        A(f"s_add_u32 {s(sMF)}, {s(sMF)}, 128")
        A(f"v_mov_b32 {v(vDUM)}, 1")
        A(f"buffer_store_dword {v(vDUM)}, off, {s(sSRD,4)}, {s(sMF)} sc1")
        A("s_waitcnt vmcnt(0)")
    A(f"s_branch L_{pfx}_done")

def part_bases(A, w):
    A(f"s_and_b32 {s(sT0)}, {s(sSTEP)}, 1")
    A(f"s_lshl_b32 {s(sT0)}, {s(sT0)}, 18")
    A(f"s_add_u32 {s(sPSA)}, {s(sWS)}, {s(sT0)}"); A(f"s_addc_u32 {s(sPSA+1)}, {s(sWS+1)}, 0")
    add64(A, sPSB, sPSA, 32768)
    A(f"s_lshl_b32 {s(sT0)}, {s(sH)}, 13"); A(f"s_add_u32 {s(sT0)}, {s(sT0)}, {w*2048}")
    add64s(A, sPLD, sPSA, sT0)

def chain_init_buffers(A, st):
    A("v_mov_b32 v124, -1"); A("v_mov_b32 v125, -1"); A("v_mov_b32 v126, -1"); A("v_mov_b32 v127, -1")
    A(f"s_lshl_b32 {s(sT0)}, {s(sH)}, 13"); A(f"s_lshl_b32 {s(sT1)}, {s(sW)}, 11"); A(f"s_add_u32 {s(sT0)}, {s(sT0)}, {s(sT1)}")
    A(f"v_add_u32 v99, {s(sT0)}, {v(vL16)}")
    for par in range(2):
        add64(A, sT2, sWS, WS_PART + par*0x40000)
        A(f"global_store_dwordx4 v99, v[124:127], {s(sT2,2)} {st}")
        A(f"global_store_dwordx4 v99, v[124:127], {s(sT2,2)} offset:1024 {st}")
    for sl in range(4):
        add64(A, sT2, sWS, WS_MEM + sl*8192)
        A(f"global_store_dword {v(vMS)}, v124, {s(sT2,2)} {st}")

def chain_scalars(A):
    A(f"s_mov_b32 {s(sSTEP)}, 0"); A(f"s_mov_b32 {s(sSPIN)}, 0"); A(f"s_mov_b32 {s(sTAG)}, 0")
    A(f"s_mov_b32 {s(sC)}, 0x3e0293ee"); A(f"s_mov_b32 {s(sC+1)}, 0x3e0293ee")
    add64(A, sPUB, sWS, WS_MEM + 8192)
    add64(A, sPOI, sWS, WS_MEM + 3*8192)
    A(f"s_lshl_b32 {s(sT0)}, {s(sW)}, 11"); A(f"s_add_u32 {s(sT0)}, {s(sT0)}, {hex(WS_MEM)}")
    add64s(A, sGAT, sWS, sT0)
    A(f"s_lshl_b32 {s(sT0)}, {s(sH)}, 13"); A(f"s_lshl_b32 {s(sT1)}, {s(sW)}, 11"); A(f"s_add_u32 {s(sT0)}, {s(sT0)}, {s(sT1)}")
    A(f"s_add_u32 {s(sT1)}, {s(sT0)}, {hex(WS_KX)}"); add64s(A, sKX, sWS, sT1)
    A(f"s_add_u32 {s(sT1)}, {s(sT0)}, {hex(WS_VX)}"); add64s(A, sVX, sWS, sT1)
    A(f"s_lshl_b32 {s(sT0)}, {s(sH)}, 11")
    A(f"s_add_u32 {s(sT1)}, {s(sT0)}, {hex(WS_KMEM)}"); add64s(A, sKM, sWS, sT1)
    A(f"s_add_u32 {s(sT1)}, {s(sT0)}, {hex(WS_VMEM)}"); add64s(A, sVM, sWS, sT1)
    A(f"s_mov_b32 {s(sSRD)}, {s(sWS)}"); A(f"s_and_b32 {s(sSRD+1)}, {s(sWS+1)}, 0xffff")
    A(f"s_mov_b32 {s(sSRD+2)}, 0x10000000"); A(f"s_mov_b32 {s(sSRD+3)}, 0x00020000")
    A(f"s_lshl_b32 {s(sT0)}, {s(sH)}, 2"); A(f"s_add_u32 {s(sKF)}, {s(sT0)}, {hex(F_KV)}")
    A(f"s_add_u32 {s(sMF)}, {s(sT0)}, {hex(F_MEM - 128)}")

def mem0_loads(A):
    A("v_and_b32 v104, 15, v100"); A("v_lshrrev_b32 v105, 4, v100")
    A("v_lshrrev_b32 v101, 2, v104"); A("v_lshlrev_b32 v101, 1, v101")
    A("v_and_b32 v102, 1, v104"); A("v_add_u32 v101, v101, v102")
    A("v_lshlrev_b32 v101, 10, v101")
    A("v_bfe_u32 v102, v104, 1, 1"); A("v_lshlrev_b32 v102, 6, v102")
    A("v_lshl_add_u32 v102, v105, 3, v102")
    A("v_add_u32 v101, v101, v102")
    A(f"s_lshl_b32 {s(sT0)}, {s(sW)}, 8")
    A(f"v_add_u32 v101, {s(sT0)}, v101")
    A(f"global_load_dwordx2 v[96:97], v101, {s(sM0,2)}")
    A(f"global_load_dwordx2 v[98:99], v101, {s(sM0,2)} offset:32")
    A(f"global_load_dwordx2 v[124:125], v101, {s(sM0,2)} offset:128")
    A(f"global_load_dwordx2 v[126:127], v101, {s(sM0,2)} offset:160")

def chain_state0(A, FAIL, counters):
    A(f"s_mov_b32 {s(sSPIN)}, 0")
    A.label("L_c_chk")
    A(f"s_add_u32 {s(sT3)}, {s(sKF)}, 128")
    A(f"buffer_load_dword {v(vFLG)}, off, {s(sSRD,4)}, {s(sKF)} sc1")
    A(f"buffer_load_dword v103, off, {s(sSRD,4)}, {s(sT3)} sc1")
    counters(A, 'load')
    A(f"s_add_u32 {s(sSPIN)}, {s(sSPIN)}, 1"); A(f"s_cmp_gt_u32 {s(sSPIN)}, 400000"); A(f"s_cbranch_scc1 {FAIL}")
    A("s_waitcnt vmcnt(0)")
    counters(A, 'check')
    A(f"v_min_u32 {v(vFLG)}, {v(vFLG)}, v103")
    A("s_nop 0")
    A(f"v_readfirstlane_b32 {s(sT3)}, {v(vFLG)}"); A("s_nop 3")
    A(f"s_cmp_lg_u32 {s(sT3)}, 0"); A(f"s_cbranch_scc0 L_c_chk")
    A(f"s_add_u32 {s(sKF)}, {s(sKF)}, 256")
    A(f"s_mov_b32 {s(sSPIN)}, 0")
    A(f"s_lshl_b32 {s(sT0)}, {s(sW)}, 11"); A(f"s_add_u32 m0, {s(sT0)}, {L_KX}"); A("s_nop 0")
    A(f"global_load_lds_dwordx4 {v(vL16)}, {s(sKX,2)} sc1")
    A(f"global_load_lds_dwordx4 {v(vL16)}, {s(sKX,2)} offset:1024 sc1")
    add64(A, sKX, sKX, 32*8192)
    A("s_mov_b32 s56, 0x05040100"); A("s_mov_b32 s57, 0x07060302")
    for k, (lo, hi) in enumerate(((96, 98), (124, 126))):
        d = 116 + 4*k
        A(f"v_perm_b32 {v(d)}, {v(hi)}, {v(lo)}, s56")
        A(f"v_perm_b32 {v(d+1)}, {v(hi)}, {v(lo)}, s57")
        A(f"v_perm_b32 {v(d+2)}, {v(hi+1)}, {v(lo+1)}, s56")
        A(f"v_perm_b32 {v(d+3)}, {v(hi+1)}, {v(lo+1)}, s57")

def chain_start(A, w, pfx):
    t0, t1 = own_t(w)
    part_bases(A, w)
    for i in range(4):
        A(f"v_mov_b32 {v(vMA+4*t0+i)}, {v(116+i)}")
        A(f"v_mov_b32 {v(vMA+4*t1+i)}, {v(120+i)}")
    stage_own(A, w)
    zero_regs(A, 56, 24)
    A("s_waitcnt vmcnt(0) lgkmcnt(0)")
    A(f"s_branch L_entry_{pfx}W{w}")
```

```python
from common import *
import kv
SPINMAX = 400000
POLL_SLEEP = 8

sX, sWQ, sWO, sWG, sWU, sWD, sOUT, sWS, sDBG = 4, 6, 8, 10, 12, 20, 22, 14, 16
sH, sW = 18, 19
sSEG, sIT, sTB, sTAG, sSPIN, sC = 24, 25, 26, 28, 29, 30
sA0, sA1, sA2, sA3 = 32, 34, 36, 38
sMLO32 = 40
sTEAM = 42
sT0, sT1, sT2, sT3 = 52, 53, 54, 55

L_XA, L_XB, L_KX, L_VX, L_Q, L_O, L_HF, L_ST, L_WD = 0, 32768, 65536, 73728, 81920, 90112, 98304, 101376, 114688
XT_PART0, XT_PART1, XT_H = 0x0, 0x100000, 0x200000

vL16, vKK, vVM, vPS, vPL, vXR, vHP, vOUTA, vWDA, vT = 1, 2, 3, 4, 5, 6, 7, 8, 9, 10
vM1, vM2, vONE, vSEL, vCSG, vCSU, vHR, vXV = 16, 20, 24, 28, 32, 36, 40, 44
B = 48
def wq_home(P, ks): return ('a', 64*P + 4*ks)
def wo_home(T, k): return ('a', 128 + 16*T + 4*k)
def wg_home(ks): return ('v', 128 + 4*ks)
def wu_home(ks): return ('v', 192 + 4*ks)

def x_addresses(A):
    L, t1, t2, t3, n_, kq_ = 0, 101, 102, 103, 104, 105
    A(f"v_and_b32 {v(n_)}, 15, v0"); A(f"v_lshrrev_b32 {v(kq_)}, 4, v0")
    A(f"v_lshlrev_b32 {v(vL16)}, 4, v0")
    A(f"v_lshrrev_b32 {v(t1)}, 2, {v(n_)}"); A(f"v_lshlrev_b32 {v(t1)}, 1, {v(t1)}")
    A(f"v_and_b32 {v(t2)}, 1, {v(n_)}"); A(f"v_add_u32 {v(t1)}, {v(t1)}, {v(t2)}")
    A(f"v_lshlrev_b32 {v(t1)}, 4, {v(t1)}")
    A(f"v_lshl_add_u32 {v(vKK)}, {v(kq_)}, 7, {v(t1)}")
    A(f"s_and_b32 {s(sT0)}, {s(sW)}, 1"); A(f"s_lshl_b32 {s(sT0)}, {s(sT0)}, 10")
    A(f"v_lshlrev_b32 {v(t1)}, 2, v0"); A(f"v_add_u32 {v(vVM)}, {s(sT0)}, {v(t1)}")
    A(f"s_lshl_b32 {s(sT0)}, {s(sW)}, 18"); A(f"s_lshl_b32 {s(sT1)}, {s(sH)}, 10"); A(f"s_add_u32 {s(sT0)}, {s(sT0)}, {s(sT1)}")
    A(f"v_add_u32 {v(vPS)}, {s(sT0)}, {v(vL16)}")
    A(f"s_lshl_b32 {s(sT0)}, {s(sH)}, 15"); A(f"s_lshl_b32 {s(sT1)}, {s(sW)}, 8"); A(f"s_add_u32 {s(sT0)}, {s(sT0)}, {s(sT1)}")
    A(f"v_lshlrev_b32 {v(t1)}, 10, {v(kq_)}"); A(f"v_lshl_add_u32 {v(t1)}, {v(n_)}, 4, {v(t1)}")
    A(f"v_add_u32 {v(vPL)}, {s(sT0)}, {v(t1)}")
    A(f"v_and_b32 {v(t1)}, 31, v0"); A(f"v_lshlrev_b32 {v(t1)}, 10, {v(t1)}")
    A(f"s_lshl_b32 {s(sT0)}, {s(sH)}, 5"); A(f"s_lshl_b32 {s(sT1)}, {s(sW)}, 3"); A(f"s_add_u32 {s(sT0)}, {s(sT0)}, {s(sT1)}")
    A(f"v_add_u32 {v(vXR)}, {s(sT0)}, {v(t1)}")
    A(f"v_and_b32 {v(t1)}, 1, {v(kq_)}"); A(f"v_lshlrev_b32 {v(t1)}, 14, {v(t1)}")
    A(f"v_lshl_add_u32 {v(t1)}, {v(n_)}, 4, {v(t1)}")
    A(f"s_lshr_b32 {s(sT0)}, {s(sH)}, 1"); A(f"s_lshl_b32 {s(sT0)}, {s(sT0)}, 10")
    A(f"s_lshl_b32 {s(sT1)}, {s(sW)}, 8"); A(f"s_add_u32 {s(sT0)}, {s(sT0)}, {s(sT1)}")
    A(f"s_and_b32 {s(sT1)}, {s(sH)}, 1"); A(f"s_lshl_b32 {s(sT1)}, {s(sT1)}, 3"); A(f"s_add_u32 {s(sT0)}, {s(sT0)}, {s(sT1)}")
    A(f"v_add_u32 {v(vHP)}, {s(sT0)}, {v(t1)}")
    A(f"s_mul_i32 {s(sT0)}, {s(sW)}, 12288"); A(f"s_add_u32 {s(sT0)}, {s(sT0)}, {L_WD}")
    A(f"v_add_u32 {v(vWDA)}, {s(sT0)}, {v(vL16)}")
    A(f"v_lshlrev_b32 {v(t1)}, 2, {v(kq_)}")
    A(f"v_mov_b32 {v(t3)}, 0xf149f2ca")
    for r in range(4):
        A(f"v_add_u32 {v(t2)}, {r}, {v(t1)}")
        A(f"v_cmp_gt_u32 vcc, {v(t2)}, {v(n_)}")
        A("s_nop 1")
        A(f"v_cndmask_b32 {v(vM1+r)}, 0, {v(t3)}, vcc")
    A(f"s_cmp_lt_u32 {s(sW)}, 2")
    A("s_cbranch_scc1 L_x_mU0")
    for r in range(4):
        A(f"v_mov_b32 {v(vM2+r)}, {v(vM1+r)}"); A(f"v_mov_b32 {v(vM1+r)}, 0")
    A("s_branch L_x_mdone")
    A.label("L_x_mU0")
    for r in range(4): A(f"v_mov_b32 {v(vM2+r)}, {v(t3)}")
    A.label("L_x_mdone")
    A(f"v_and_b32 {v(t2)}, 7, {v(n_)}")
    for jj in range(4):
        A(f"v_mov_b32 {v(vSEL+jj)}, 0")
        A(f"v_mov_b32 {v(t3)}, 0x3f80")
        A(f"v_cmp_eq_u32 vcc, {2*jj}, {v(t2)}"); A("s_nop 1")
        A(f"v_cndmask_b32 {v(vSEL+jj)}, {v(vSEL+jj)}, {v(t3)}, vcc")
        A(f"v_mov_b32 {v(t3)}, 0x3f800000")
        A(f"v_cmp_eq_u32 vcc, {2*jj+1}, {v(t2)}"); A("s_nop 1")
        A(f"v_cndmask_b32 {v(vSEL+jj)}, {v(vSEL+jj)}, {v(t3)}, vcc")
        A(f"v_mov_b32 {v(vONE+jj)}, 0x3f803f80")
    A(f"s_mov_b32 {s(sMLO32)}, -1"); A(f"s_mov_b32 {s(sMLO32+1)}, 0")
    A(f"s_mov_b32 {s(sC)}, 0x3e0293ee"); A(f"s_mov_b32 {s(sC+1)}, 0x3e0293ee")

def x_load_weights(A):
    A("v_mov_b32 v100, v0")
    D0, D1, T0_, T1_, T0h, T1h = 106, 107, 108, 109, 110, 111
    A(f"s_lshl_b32 {s(sT1)}, {s(sH)}, 8")
    kv.wload_addresses(A, D0, D1, T0_, T1_, 13, sT1)
    A(f"v_add_u32 {v(T0h)}, 0x10000, {v(T0_)}"); A(f"v_add_u32 {v(T1h)}, 0x10000, {v(T1_)}")
    E0, E1, U0, U1, U0h, U1h = 112, 113, 114, 115, 116, 117
    t1, t2, t3 = 101, 102, 103
    for (dst, x4) in ((E0, 0), (E1, 8)):
        A(f"v_lshrrev_b32 {v(t1)}, 4, v100"); A(f"v_lshlrev_b32 {v(t2)}, 1, {v(t1)}")
        A(f"v_or_b32 {v(t2)}, {x4}, {v(t2)}")
        A(f"v_and_b32 {v(t3)}, 15, v100"); A(f"v_xor_b32 {v(t2)}, {v(t2)}, {v(t3)}")
        A(f"v_lshrrev_b32 {v(t3)}, 2, {v(t2)}"); A(f"v_lshlrev_b32 {v(t3)}, 8, {v(t3)}")
        A(f"v_and_b32 {v(t2)}, 3, {v(t2)}"); A(f"v_lshl_add_u32 {v(t3)}, {v(t2)}, 4, {v(t3)}")
        A(f"s_lshl_b32 {s(sT0)}, {s(sW)}, 4"); A(f"v_add_u32 {v(t1)}, {s(sT0)}, {v(t1)}")
        A(f"v_lshlrev_b32 {v(t1)}, 10, {v(t1)}")
        A(f"s_lshl_b32 {s(sT0)}, {s(sH)}, 17")
        A(f"v_add3_u32 {v(dst)}, {v(t1)}, {v(t3)}, {s(sT0)}")
    A(f"v_lshrrev_b32 {v(t1)}, 4, v100"); A(f"v_bfe_u32 {v(t2)}, v100, 2, 2")
    A(f"v_lshl_add_u32 {v(t1)}, {v(t1)}, 2, {v(t2)}")
    A(f"v_and_b32 {v(t2)}, 7, {v(t1)}"); A(f"v_lshlrev_b32 {v(t2)}, 1, {v(t2)}")
    A(f"v_bfe_u32 {v(t3)}, v100, 1, 1"); A(f"s_lshl_b32 {s(sT0)}, {s(sW)}, 2"); A(f"v_or_b32 {v(t3)}, {s(sT0)}, {v(t3)}")
    A(f"v_xor_b32 {v(t2)}, {v(t2)}, {v(t3)}")
    A(f"v_lshlrev_b32 {v(t1)}, 8, {v(t1)}"); A(f"v_lshl_add_u32 {v(t1)}, {v(t2)}, 4, {v(t1)}")
    A(f"v_and_b32 {v(t3)}, 1, v100"); A(f"v_lshl_add_u32 {v(U0)}, {v(t3)}, 3, {v(t1)}")
    A(f"v_xor_b32 {v(U1)}, 32, {v(U0)}")
    A(f"v_add_u32 {v(U0h)}, 0x10000, {v(U0)}"); A(f"v_add_u32 {v(U1h)}, 0x10000, {v(U1)}")
    G0 = 118
    A(f"v_and_b32 {v(t1)}, 7, v100"); A(f"v_min_u32 {v(t1)}, 5, {v(t1)}"); A(f"v_lshlrev_b32 {v(t1)}, 3, {v(t1)}")
    A(f"s_mul_i32 {s(sT0)}, {s(sH)}, 48"); A(f"v_add_u32 {v(t1)}, {s(sT0)}, {v(t1)}")
    A(f"v_min_u32 {v(t1)}, 1368, {v(t1)}"); A(f"v_lshlrev_b32 {v(t1)}, 1, {v(t1)}")
    A(f"v_lshrrev_b32 {v(t2)}, 3, v100"); A(f"s_mov_b32 {s(sT0)}, 2752"); A(f"v_mul_lo_u32 {v(t2)}, {v(t2)}, {s(sT0)}")
    A(f"v_add_u32 {v(G0)}, {v(t1)}, {v(t2)}")
    GT = 119
    A(f"v_lshrrev_b32 {v(t1)}, 4, v100"); A(f"v_bfe_u32 {v(t2)}, v100, 2, 2")
    A(f"v_lshl_add_u32 {v(t1)}, {v(t1)}, 2, {v(t2)}"); A(f"v_lshlrev_b32 {v(t1)}, 7, {v(t1)}")
    A(f"v_bfe_u32 {v(t2)}, v100, 1, 1"); A(f"s_min_u32 {s(sT0)}, {s(sW)}, 2"); A(f"s_lshl_b32 {s(sT0)}, {s(sT0)}, 1")
    A(f"v_add_u32 {v(t2)}, {s(sT0)}, {v(t2)}"); A(f"v_lshl_add_u32 {v(t1)}, {v(t2)}, 4, {v(t1)}")
    A(f"v_and_b32 {v(t2)}, 1, v100"); A(f"v_lshl_add_u32 {v(GT)}, {v(t2)}, 3, {v(t1)}")
    GTh = 120
    A(f"v_add_u32 {v(GTh)}, 0x10000, {v(GT)}")
    DT, DTh = 121, 122
    A(f"v_lshrrev_b32 {v(t1)}, 4, v100"); A(f"v_bfe_u32 {v(t2)}, v100, 2, 2")
    A(f"v_lshl_add_u32 {v(t1)}, {v(t1)}, 2, {v(t2)}"); A(f"v_lshlrev_b32 {v(t1)}, 10, {v(t1)}")
    A(f"v_and_b32 {v(t2)}, 3, v100"); A(f"v_lshl_add_u32 {v(t1)}, {v(t2)}, 3, {v(t1)}")
    A(f"s_lshl_b32 {s(sT0)}, {s(sW)}, 8"); A(f"v_add_u32 {v(DT)}, {s(sT0)}, {v(t1)}")
    A(f"v_add_u32 {v(DTh)}, 0x10000, {v(DT)}")
    A(f"v_lshlrev_b32 v123, 4, v100")
    chunks = [('Q', c) for c in range(8)] + [('O', (kp, Tp)) for kp in range(2) for Tp in range(4)] + \
             [(m, c) for m in 'GU' for c in range(4)] + [('D', t) for t in range(3)]
    def issue(c, slot):
        m, x = chunks[c]
        for i in range(4):
            if m == 'Q': add64(A, sT2, sWQ, (64*x + 4*i)*8192); va = D0 if i < 2 else D1
            elif m == 'O': add64(A, sT2, sWO, (64*x[0] + 4*i)*1024 + 64*x[1]); va = E0 if i % 2 == 0 else E1
            elif m in 'GU':
                A(f"s_mul_i32 {s(sT0)}, {s(sW)}, {32*2752}"); A(f"s_add_u32 {s(sT0)}, {s(sT0)}, {(128*x + 8*i)*2752}")
                add64s(A, sT2, sWG if m == 'G' else sWU, sT0); va = G0
            else:
                A(f"s_mul_i32 {s(sT0)}, {s(sH)}, 48"); A(f"s_lshl_b32 {s(sT1)}, {s(sW)}, 2"); A(f"s_add_u32 {s(sT0)}, {s(sT0)}, {s(sT1)}")
                A(f"s_add_u32 {s(sT0)}, {s(sT0)}, {16*x + i}"); A(f"s_min_u32 {s(sT0)}, {s(sT0)}, 1375"); A(f"s_lshl_b32 {s(sT0)}, {s(sT0)}, 10")
                add64s(A, sT2, sWD, sT0); va = 123
            A(f"s_lshl_b32 {s(sT0)}, {s(sW)}, 12")
            A(f"s_add_u32 m0, {s(sT0)}, {slot*16384 + i*1024}")
            A("s_nop 0")
            A(f"global_load_lds_dwordx4 {v(va)}, {s(sT2,2)}")
    def consume(c, slot):
        m, x = chunks[c]
        so = (slot & 3)*16384; hi = slot >> 2
        if m == 'Q':
            for P in range(2):
                base = [[T0_, T0h], [T1_, T1h]][P][hi]
                for k2 in range(2):
                    for hh in range(2):
                        A(f"ds_read_b64_tr_b16 {rstr(wq_home(P, 2*x+k2), 2*hh, 2)}, {v(base)} offset:{so + (32*k2 + 4*hh)*256}")
        elif m == 'O':
            for P in range(2):
                base = [[U0, U0h], [U1, U1h]][P][hi]
                for k2 in range(2):
                    for hh in range(2):
                        A(f"ds_read_b64_tr_b16 {rstr(wo_home(2*x[1]+P, 2*x[0]+k2), 2*hh, 2)}, {v(base)} offset:{so + (32*k2 + 16*hh)*256}")
        elif m in 'GU':
            hm = wg_home if m == 'G' else wu_home
            for k4 in range(4):
                for hh in range(2):
                    A(f"ds_read_b64_tr_b16 {rstr(hm(4*x+k4), 2*hh, 2)}, {v(GTh if hi else GT)} offset:{so + (32*k4 + 16*hh)*128}")
        else:
            for T in range(8):
                A(f"ds_read_b64_tr_b16 {v(B+2*T,2)}, {v(DTh if hi else DT)} offset:{so + 32*T}")
            A("s_waitcnt lgkmcnt(0)")
            A(f"s_mul_i32 {s(sT0)}, {s(sH)}, 3"); A(f"s_add_u32 {s(sT0)}, {s(sT0)}, {x}")
            A(f"s_cmp_lt_u32 {s(sT0)}, 86")
            A(f"s_cbranch_scc1 L_x_wdok{x}")
            zero_regs(A, B, 16)
            A.label(f"L_x_wdok{x}")
            A(f"v_lshrrev_b32 v124, 1, {v(vWDA)}")
            A(f"s_mul_i32 {s(sT0)}, {s(sW)}, 12288"); A(f"s_add_u32 {s(sT0)}, {s(sT0)}, {L_WD}")
            A(f"v_lshlrev_b32 v124, 3, v100"); A(f"v_add_u32 v124, {s(sT0)}, v124")
            for T in range(8):
                if x < 2: A(f"ds_write_b64 {v(vWDA)}, {v(B+2*T,2)} offset:{T*1024 + 8*x}")
                else: A(f"ds_write_b64 v124, {v(B+2*T,2)} offset:{8192 + T*512}")
    ring_loader(A, chunks, 7, 6, issue, consume)
    for (hm, dst) in ((wg_home, vCSG), (wu_home, vCSU)):
        for ks in range(16):
            A(f"v_mfma_f32_16x16x32_bf16 {v(dst,4)}, {rstr(hm(ks))}, {v(vONE,4)}, {'0' if ks == 0 else v(dst,4)}")
    A("s_nop 7")

def poll_flag(A, soff_reg, lbl, sleep=None):
    sleep = POLL_SLEEP if sleep is None else sleep
    A(f"s_cmp_eq_u32 {s(sW)}, 0"); A(f"s_cbranch_scc0 L_{lbl}_ok")
    A(f"v_mov_b32 {v(vT)}, {s(soff_reg)}")
    A(f"s_mov_b32 {s(sSPIN)}, 0")
    A.label(f"L_{lbl}")
    A(f"global_load_dword {v(vT+1)}, {v(vT)}, {s(sWS,2)} sc1")
    A(f"s_add_u32 {s(sSPIN)}, {s(sSPIN)}, 1")
    A(f"s_cmp_gt_u32 {s(sSPIN)}, {SPINMAX}"); A("s_cbranch_scc1 L_fail")
    A("s_waitcnt vmcnt(0)")
    A(f"v_readfirstlane_b32 {s(sT1)}, {v(vT+1)}")
    A("s_nop 3")
    A(f"s_cmp_lg_u32 {s(sT1)}, 0")
    A(f"s_cbranch_scc1 L_{lbl}_ok")
    if sleep: A(f"s_sleep {sleep}")
    A(f"s_branch L_{lbl}")
    A.label(f"L_{lbl}_ok")
    A("s_barrier")

def reduce_stage(A, part_off, lbl, st):
    RL, RA = B, B+32
    add64(A, sA0, sTB, part_off)
    A(f"s_mov_b32 {s(sSPIN)}, 0")
    A.label(f"L_{lbl}")
    for i in range(8):
        if i == 0: A(f"v_mov_b32 {v(vT)}, {v(vPL)}")
        else: A(f"v_add_u32 {v(vT)}, 4096, {v(vT)}")
        A(f"global_load_dwordx4 {v(RL+4*i,4)}, {v(vT)}, {s(sA0,2)} sc1")
    A(f"s_add_u32 {s(sSPIN)}, {s(sSPIN)}, 1")
    A(f"s_cmp_gt_u32 {s(sSPIN)}, {SPINMAX}"); A("s_cbranch_scc1 L_fail")
    A("s_waitcnt vmcnt(0)")
    t = vT+1
    A(f"v_bitop3_b32 {v(t)}, {v(RL)}, {v(RL+4)}, {s(sTAG)} bitop3:0x7e")
    for i in range(2, 8, 2):
        A(f"v_bitop3_b32 {v(t+1)}, {v(RL+4*i)}, {v(RL+4*i+4)}, {s(sTAG)} bitop3:0x7e")
        A(f"v_or_b32 {v(t)}, {v(t)}, {v(t+1)}")
    A(f"v_and_b32 {v(t)}, 1, {v(t)}")
    A(f"v_cmp_ne_u32 vcc, 0, {v(t)}")
    A(f"s_cbranch_vccnz L_{lbl}")
    for i in range(8):
        A(f"v_mfma_f32_16x16x32_bf16 {v(RA,4)}, {v(vSEL,4)}, {v(RL+4*i,4)}, {'0' if i == 0 else v(RA,4)}")
    A("s_nop 7")
    return RA

def bf16_round(A, r, tmp):
    A(f"v_cvt_pk_bf16_f32 {v(tmp)}, {v(r)}, {v(r+1)}")
    A(f"v_cvt_pk_bf16_f32 {v(tmp+1)}, {v(r+2)}, {v(r+3)}")
    A(f"v_lshlrev_b32 {v(r)}, 16, {v(tmp)}"); A(f"v_and_b32 {v(r+1)}, 0xffff0000, {v(tmp)}")
    A(f"v_lshlrev_b32 {v(r+2)}, 16, {v(tmp+1)}"); A(f"v_and_b32 {v(r+3)}, 0xffff0000, {v(tmp+1)}")

def partial_stage(A, part_off, nk, afrag, bfrag, pre_T, st):
    AC = (B+32, B+40); CH = (B+48, B+52)
    add64(A, sA0, sTB, part_off)
    def emit_mfma(T):
        ac = AC[T & 1]
        pre_T(T)
        prev = None
        for k in range(nk):
            op, fa = afrag(T, k)
            if prev is not None and prev != op: A("s_nop 4")
            prev = op
            for U in range(2):
                A(f"{op} {v(ac+4*U,4)}, {fa}, {bfrag(U, k)}, {'0' if k == 0 else v(ac+4*U,4)}")
    def emit_out(T):
        ac = AC[T & 1]; ch = CH[T & 1]
        A(f"v_cvt_pk_bf16_f32 {v(ch)}, {v(ac)}, {v(ac+1)}")
        A(f"v_cvt_pk_bf16_f32 {v(ch+1)}, {v(ac+2)}, {v(ac+3)}")
        A(f"v_cvt_pk_bf16_f32 {v(ch+2)}, {v(ac+4)}, {v(ac+5)}")
        A(f"v_cvt_pk_bf16_f32 {v(ch+3)}, {v(ac+6)}, {v(ac+7)}")
        A(f"v_and_or_b32 {v(ch)}, {v(ch)}, -2, {s(sTAG)}")
        A(f"global_store_dwordx4 {v(vPS)}, {v(ch,4)}, {s(sA0,2)} {st}")
        add64(A, sA0, sA0, 32768)
    emit_mfma(0)
    for T in range(1, 8):
        emit_mfma(T)
        emit_out(T-1)
    A("s_nop 7")
    emit_out(7)

def dbg_dump(A, lds_base, nbytes, off, tmp=B+76):
    per = nbytes // 4
    add64(A, sA3, sTB, off)
    A(f"s_mul_i32 {s(sT0)}, {s(sW)}, {per}")
    A(f"s_lshl_b32 {s(sT1)}, {s(sH)}, 15"); A(f"s_add_u32 {s(sT1)}, {s(sT1)}, {s(sT0)}")
    A(f"v_add_u32 {v(vT)}, {s(sT0)}, {v(vL16)}"); A(f"v_add_u32 {v(vT)}, {lds_base}, {v(vT)}")
    A(f"v_add_u32 {v(vT+1)}, {s(sT1)}, {v(vL16)}")
    for i in range(per // 1024):
        A(f"ds_read_b128 {v(tmp,4)}, {v(vT)} offset:{i*1024}")
        A("s_waitcnt lgkmcnt(0)")
        A(f"global_store_dwordx4 {v(vT+1)}, {v(tmp,4)}, {s(sA3,2)} offset:{i*1024}")
        A("s_waitcnt vmcnt(0)")

def dbg_regs(A, regs, slot0):
    add64(A, sA3, sTB, 0x280000)
    A(f"s_lshl_b32 {s(sT0)}, {s(sH)}, 2"); A(f"s_add_u32 {s(sT0)}, {s(sT0)}, {s(sW)}"); A(f"s_lshl_b32 {s(sT0)}, {s(sT0)}, 12")
    A(f"v_lshlrev_b32 v14, 2, v0"); A(f"v_add_u32 v14, {s(sT0)}, v14")
    for i, r in enumerate(regs):
        A(f"global_store_dword v14, {v(r)}, {s(sA3,2)} offset:{(slot0+i)*256}")
    A("s_waitcnt vmcnt(0)")

class XStamp:
    def __init__(self, on): self.on = on; self.names = []
    def __call__(self, A, name):
        if not self.on: return
        if name not in self.names: self.names.append(name)
        k = self.names.index(name)
        A("s_memtime s[60:61]"); A("s_waitcnt lgkmcnt(0)")
        A("s_sub_u32 s63, s60, s62"); A(f"s_add_u32 s{64+k}, s{64+k}, s63"); A("s_mov_b32 s62, s60")

def x_loop(A, nteam, st='', lbl='X', dbg=False, stamps=False):
    XS = XStamp(stamps)
    if stamps:
        for k in range(12): A(f"s_mov_b32 s{64+k}, 0")
        A("s_memtime s[60:61]"); A("s_waitcnt lgkmcnt(0)"); A("s_mov_b32 s62, s60")
    A(f"s_mov_b32 {s(sIT)}, 0")
    A.label(f"L_{lbl}_loop")
    A(f"s_and_b32 {s(sTAG)}, {s(sIT)}, 1")
    A(f"s_lshl_b32 {s(sT3)}, {s(sSEG)}, 5"); A(f"s_add_u32 {s(sT3)}, {s(sT3)}, {s(sH)}")
    A(f"s_mov_b32 s44, {s(sT3)}")
    A(f"s_lshl_b32 {s(sT0)}, s44, 2"); A(f"s_add_u32 s45, {s(sT0)}, {hex(F_KV)}")
    poll_flag(A, 45, f"{lbl}_kvf")
    XS(A, 'kvwait')
    A(f"s_lshl_b32 {s(sT0)}, {s(sSEG)}, 15"); A(f"s_add_u32 {s(sT0)}, {s(sT0)}, {hex(WS_XN)}")
    add64s(A, sA1, sWS, sT0)
    for i in range(8):
        if i % 4 == 0:
            A(f"s_lshl_b32 {s(sT0)}, {s(sW)}, 13"); A(f"s_add_u32 {s(sT0)}, {s(sT0)}, {i*1024}")
            A(f"s_add_u32 m0, {s(sT0)}, {L_XA}")
            add64s(A, sT2, sA1, sT0)
        A(f"global_load_lds_dwordx4 {v(vL16)}, {s(sT2,2)} offset:{(i%4)*1024} sc1")
    for (ws_off, lds) in ((WS_KX, L_KX), (WS_VX, L_VX)):
        A(f"s_lshl_b32 {s(sT0)}, s44, 13"); A(f"s_lshl_b32 {s(sT1)}, {s(sW)}, 11"); A(f"s_add_u32 {s(sT0)}, {s(sT0)}, {s(sT1)}")
        A(f"s_add_u32 {s(sT0)}, {s(sT0)}, {hex(ws_off)}")
        add64s(A, sT2, sWS, sT0)
        A(f"s_add_u32 m0, {s(sT1)}, {lds}")
        A("s_nop 0")
        A(f"global_load_lds_dwordx4 {v(vL16)}, {s(sT2,2)} sc1")
        A(f"global_load_lds_dwordx4 {v(vL16)}, {s(sT2,2)} offset:1024 sc1")
    A(f"s_lshl_b32 {s(sT0)}, {s(sSEG)}, 15")
    add64s(A, sA1, sX, sT0)
    A(f"global_load_dwordx2 {v(vXV,2)}, {v(vXR)}, {s(sA1,2)}")
    A("s_waitcnt vmcnt(0)")
    A("s_barrier")
    XS(A, 'dma')
    XF, QA = B, B+16
    seq = [(U, ks) for U in range(2) for ks in range(16)]
    def rd(i, base_lds):
        U, ks = seq[i]
        A(f"ds_read_b128 {v(XF+4*(i%4),4)}, {v(vL16)} offset:{base_lds + U*16384 + ks*1024}")
    for i in range(3): rd(i, L_XA)
    for i, (U, ks) in enumerate(seq):
        if i + 3 < len(seq): rd(i+3, L_XA)
        A(f"s_waitcnt lgkmcnt({min(3, len(seq)-1-i)})")
        for P in range(2):
            d = QA + 8*P + 4*U
            A(f"v_mfma_f32_16x16x32_bf16 {v(d,4)}, {rstr(wq_home(P,ks))}, {v(XF+4*(i%4),4)}, {'0' if ks == 0 else v(d,4)}")
    A("s_nop 7")
    QP = B+32
    for U in range(2):
        for r in range(4):
            A(f"v_cvt_pk_bf16_f32 {v(QP+4*U+r)}, {v(QA+4*U+r)}, {v(QA+8+4*U+r)}")
    A(f"s_lshl_b32 {s(sT0)}, {s(sW)}, 10")
    A(f"v_add_u32 {v(vT)}, {s(sT0)}, {v(vL16)}")
    A(f"v_add_u32 {v(vT)}, {L_Q}, {v(vT)}")
    A(f"ds_write_b128 {v(vT)}, {v(QP,4)}")
    A(f"ds_write_b128 {v(vT)}, {v(QP+4,4)} offset:4096")
    XS(A, 'Q')
    A(f"s_lshl_b32 {s(sT0)}, s44, 2"); A(f"s_add_u32 s45, {s(sT0)}, {hex(F_MEM)}")
    poll_flag(A, 45, f"{lbl}_memf")
    XS(A, 'memwait')
    KK, KX1, KX2, S0, S1, S2 = B+16, B+32, B+48, B+64, B+68, B+72
    A(f"s_lshl_b32 {s(sT0)}, s44, 11"); A(f"s_add_u32 {s(sT1)}, {s(sT0)}, {hex(WS_KMEM)}")
    add64s(A, sA1, sWS, sT1)
    for ks in range(4):
        A(f"global_load_dwordx4 {v(KK+4*ks,4)}, {v(vKK)}, {s(sA1,2)} offset:{ks*512} sc1")
    A(f"s_add_u32 {s(sT1)}, {s(sT0)}, {hex(WS_VMEM)}")
    add64s(A, sA2, sWS, sT1)
    VMS, VMR = 124, 112
    for i in range(4):
        A(f"global_load_dword {v(VMS+i)}, {v(vVM)}, {s(sA2,2)} offset:{i*256} sc1")
    A("s_waitcnt lgkmcnt(0)")
    A("s_barrier")
    if dbg: dbg_dump(A, L_Q, 8192, 0x300000, tmp=12)
    QF = B
    A(f"s_lshr_b32 {s(sT0)}, {s(sW)}, 1"); A(f"s_lshl_b32 {s(sT0)}, {s(sT0)}, 12")
    A(f"v_add_u32 {v(vT)}, {s(sT0)}, {v(vL16)}")
    A(f"v_add_u32 {v(vT)}, {L_Q}, {v(vT)}")
    for ks in range(4):
        A(f"ds_read_b128 {v(QF+4*ks,4)}, {v(vT)} offset:{ks*1024}")
    A(f"v_add_u32 {v(vT+1)}, {L_KX}, {v(vL16)}")
    for ks in range(4):
        A(f"ds_read_b128 {v(KX1+4*ks,4)}, {v(vT+1)} offset:{ks*1024}")
        A(f"ds_read_b128 {v(KX2+4*ks,4)}, {v(vT+1)} offset:{4096 + ks*1024}")
    A("s_waitcnt vmcnt(0) lgkmcnt(0)")
    for ks in range(4):
        A(f"v_mfma_f32_16x16x32_bf16 {v(S0,4)}, {v(KK+4*ks,4)}, {v(QF+4*ks,4)}, {'0' if ks == 0 else v(S0,4)}")
        A(f"v_mfma_f32_16x16x32_bf16 {v(S1,4)}, {v(KX1+4*ks,4)}, {v(QF+4*ks,4)}, {v(vM1,4) if ks == 0 else v(S1,4)}")
        A(f"v_mfma_f32_16x16x32_bf16 {v(S2,4)}, {v(KX2+4*ks,4)}, {v(QF+4*ks,4)}, {v(vM2,4) if ks == 0 else v(S2,4)}")
    VX = B+16
    A(f"s_and_b32 {s(sT0)}, {s(sW)}, 1"); A(f"s_lshl_b32 {s(sT0)}, {s(sT0)}, 12")
    A(f"v_add_u32 {v(vT)}, {s(sT0)}, {v(vL16)}")
    A(f"v_add_u32 {v(vT)}, {L_VX}, {v(vT)}")
    for i in range(4):
        A(f"ds_read_b128 {v(VX+4*i,4)}, {v(vT)} offset:{i*1024}")
    A("s_nop 4")
    Mx, Tm = vT+2, vT+3
    if dbg:
        A("s_nop 7"); dbg_regs(A, [S1, S1+1, S1+2, S1+3, S2, S2+1, S2+2, S2+3, S0, S0+1], 0)
    A(f"v_max3_f32 {v(Mx)}, {v(S1)}, {v(S1+1)}, {v(S1+2)}")
    A(f"v_max3_f32 {v(Mx)}, {v(Mx)}, {v(S1+3)}, {v(S2)}")
    A(f"v_max3_f32 {v(Mx)}, {v(Mx)}, {v(S2+1)}, {v(S2+2)}")
    A(f"v_max3_f32 {v(Mx)}, {v(Mx)}, {v(S2+3)}, {v(S0)}")
    A(f"v_max_f32 {v(Mx)}, {v(Mx)}, {v(S0+1)}")
    xor_swap_reduce(A, Mx, Tm, 'v_max_f32')
    A(f"v_mul_f32 {v(Mx)}, {s(sC)}, {v(Mx)}")
    for r in (S1, S1+1, S1+2, S1+3, S2, S2+1, S2+2, S2+3, S0, S0+1):
        A(f"v_fma_f32 {v(r)}, {v(r)}, {s(sC)}, -{v(Mx)}")
    for r in (S1, S1+1, S1+2, S1+3, S2, S2+1, S2+2, S2+3, S0, S0+1):
        A(f"v_exp_f32 {v(r)}, {v(r)}")
    Px, Pm = B, B+4
    A(f"v_mov_b32 {v(Pm+1)}, 0")
    A(f"v_cvt_pk_bf16_f32 {v(Px)}, {v(S1)}, {v(S1+1)}")
    A(f"v_cvt_pk_bf16_f32 {v(Px+1)}, {v(S1+2)}, {v(S1+3)}")
    A(f"v_cvt_pk_bf16_f32 {v(Px+2)}, {v(S2)}, {v(S2+1)}")
    A(f"v_cvt_pk_bf16_f32 {v(Px+3)}, {v(S2+2)}, {v(S2+3)}")
    A(f"v_cvt_pk_bf16_f32 {v(Pm)}, {v(S0)}, {v(S0+1)}")
    for i in range(4):
        A(f"v_mov_b32 {v(VMR+2*i)}, {v(VMS+i)}"); A(f"v_mov_b32 {v(VMR+2*i+1)}, 0")
    A("s_waitcnt lgkmcnt(0)")
    OA, LL = B+32, B+48
    A(f"v_mfma_f32_16x16x32_bf16 {v(LL,4)}, {v(vONE,4)}, {v(Px,4)}, 0")
    for i in range(4):
        A(f"v_mfma_f32_16x16x32_bf16 {v(OA+4*i,4)}, {v(VX+4*i,4)}, {v(Px,4)}, 0")
    A("s_nop 1")
    A(f"v_mfma_f32_16x16x16_bf16 {v(LL,4)}, {v(vONE,2)}, {v(Pm,2)}, {v(LL,4)}")
    for i in range(4):
        A(f"v_mfma_f32_16x16x16_bf16 {v(OA+4*i,4)}, {v(VMR+2*i,2)}, {v(Pm,2)}, {v(OA+4*i,4)}")
    if dbg:
        A("s_nop 7"); dbg_regs(A, [LL, OA, OA+1, Px, Pm], 10)
    A(f"v_rcp_f32 {v(Mx)}, {v(LL)}")
    A("s_nop 5")
    for i in range(16): A(f"v_mul_f32 {v(OA+i)}, {v(OA+i)}, {v(Mx)}")
    OP = B+52
    for k2 in range(2):
        for hh in range(2):
            b = OA + 8*k2 + 4*hh
            A(f"v_cvt_pk_bf16_f32 {v(OP+4*k2+2*hh)}, {v(b)}, {v(b+1)}")
            A(f"v_cvt_pk_bf16_f32 {v(OP+4*k2+2*hh+1)}, {v(b+2)}, {v(b+3)}")
    A(f"s_lshl_b32 {s(sT0)}, {s(sW)}, 11")
    A(f"v_add_u32 {v(vT)}, {s(sT0)}, {v(vL16)}")
    A(f"v_add_u32 {v(vT)}, {L_O}, {v(vT)}")
    A(f"ds_write_b128 {v(vT)}, {v(OP,4)}")
    A(f"ds_write_b128 {v(vT)}, {v(OP+4,4)} offset:1024")
    A("s_waitcnt lgkmcnt(0)")
    A("s_barrier")
    XS(A, 'attn')
    if dbg: dbg_dump(A, L_O, 8192, 0x300000 + 8192, tmp=12)
    A(f"v_add_u32 {v(vT)}, {L_O}, {v(vL16)}")
    for U in range(2):
        for k in range(4):
            A(f"ds_read_b128 {v(B+16*U+4*k,4)}, {v(vT)} offset:{U*4096 + k*1024}")
    A("s_waitcnt lgkmcnt(0)")
    partial_stage(A, XT_PART0, 4, lambda T, k: ("v_mfma_f32_16x16x32_bf16", rstr(wo_home(T, k))),
                  lambda U, k: v(B+16*U+4*k, 4), lambda T: None, st)
    XS(A, 'Wo')
    RA = reduce_stage(A, XT_PART0, f"{lbl}_r0", st)
    XS(A, 'red0')
    bf16_round(A, RA, vT)
    A(f"v_lshlrev_b32 {v(vT)}, 16, {v(vXV)}"); A(f"v_add_f32 {v(vHR)}, {v(RA)}, {v(vT)}")
    A(f"v_and_b32 {v(vT)}, 0xffff0000, {v(vXV)}"); A(f"v_add_f32 {v(vHR+1)}, {v(RA+1)}, {v(vT)}")
    A(f"v_lshlrev_b32 {v(vT)}, 16, {v(vXV+1)}"); A(f"v_add_f32 {v(vHR+2)}, {v(RA+2)}, {v(vT)}")
    A(f"v_and_b32 {v(vT)}, 0xffff0000, {v(vXV+1)}"); A(f"v_add_f32 {v(vHR+3)}, {v(RA+3)}, {v(vT)}")
    A(f"v_cvt_pk_bf16_f32 {v(vT)}, {v(vHR)}, {v(vHR+1)}")
    A(f"v_cvt_pk_bf16_f32 {v(vT+1)}, {v(vHR+2)}, {v(vHR+3)}")
    A(f"v_lshlrev_b32 {v(vHR)}, 16, {v(vT)}"); A(f"v_and_b32 {v(vHR+1)}, 0xffff0000, {v(vT)}")
    A(f"v_lshlrev_b32 {v(vHR+2)}, 16, {v(vT+1)}"); A(f"v_and_b32 {v(vHR+3)}, 0xffff0000, {v(vT+1)}")
    add64(A, sA0, sTB, XT_H)
    A(f"s_mov_b64 exec, {s(sMLO32,2)}")
    A(f"global_store_dwordx2 {v(vHP)}, {v(vT,2)}, {s(sA0,2)} {st}")
    A("s_mov_b64 exec, -1")
    A("s_waitcnt vmcnt(0)")
    A("s_barrier")
    A(f"s_lshl_b32 {s(sT0)}, {s(sTEAM)}, 8"); A(f"s_add_u32 s46, {s(sT0)}, {hex(F_H)}")
    A(f"s_cmp_eq_u32 {s(sW)}, 0"); A(f"s_cbranch_scc0 L_{lbl}_nofl")
    A(f"s_lshl_b32 {s(sT0)}, {s(sH)}, 2"); A(f"s_add_u32 {s(sT0)}, {s(sT0)}, s46")
    A(f"s_add_u32 {s(sT1)}, {s(sIT)}, 1")
    A(f"v_mov_b32 {v(vT)}, {s(sT0)}"); A(f"v_mov_b32 {v(vT+1)}, {s(sT1)}")
    A("s_mov_b64 exec, 1")
    A(f"global_store_dword {v(vT)}, {v(vT+1)}, {s(sWS,2)} {st}")
    A("s_mov_b64 exec, -1")
    A.label(f"L_{lbl}_nofl")
    A(f"v_and_b32 {v(vT)}, 31, v0"); A(f"v_lshlrev_b32 {v(vT)}, 2, {v(vT)}"); A(f"v_add_u32 {v(vT)}, s46, {v(vT)}")
    A(f"s_add_u32 s47, {s(sIT)}, 1")
    A(f"s_mov_b32 {s(sSPIN)}, 0")
    A.label(f"L_{lbl}_hw")
    A(f"global_load_dword {v(vT+1)}, {v(vT)}, {s(sWS,2)} sc1")
    A(f"s_add_u32 {s(sSPIN)}, {s(sSPIN)}, 1")
    A(f"s_cmp_gt_u32 {s(sSPIN)}, {SPINMAX}"); A("s_cbranch_scc1 L_fail")
    A("s_waitcnt vmcnt(0)")
    A(f"v_cmp_gt_u32 vcc, s47, {v(vT+1)}")
    A(f"s_cbranch_vccnz L_{lbl}_hw")
    add64(A, sA1, sTB, XT_H)
    for i in range(8):
        if i % 4 == 0:
            A(f"s_lshl_b32 {s(sT0)}, {s(sW)}, 13"); A(f"s_add_u32 {s(sT0)}, {s(sT0)}, {i*1024}")
            A(f"s_add_u32 m0, {s(sT0)}, {L_XA}")
            add64s(A, sT2, sA1, sT0)
        A(f"global_load_lds_dwordx4 {v(vL16)}, {s(sT2,2)} offset:{(i%4)*1024} sc1")
    A("s_waitcnt vmcnt(0)")
    A("s_barrier")
    XS(A, 'hgather')
    GA, UA = B+16, B+24
    A(f"s_cmp_eq_u32 {s(sW)}, 3"); A(f"s_cbranch_scc1 L_{lbl}_stats")
    for i in range(3): rd(i, L_XA)
    for i, (U, ks) in enumerate(seq):
        if i + 3 < len(seq): rd(i+3, L_XA)
        A(f"s_waitcnt lgkmcnt({min(3, len(seq)-1-i)})")
        A(f"v_mfma_f32_16x16x32_bf16 {v(GA+4*U,4)}, {rstr(wg_home(ks))}, {v(XF+4*(i%4),4)}, {'0' if ks == 0 else v(GA+4*U,4)}")
        A(f"v_mfma_f32_16x16x32_bf16 {v(UA+4*U,4)}, {rstr(wu_home(ks))}, {v(XF+4*(i%4),4)}, {'0' if ks == 0 else v(UA+4*U,4)}")
    A(f"s_branch L_{lbl}_s7j")
    A.label(f"L_{lbl}_stats")
    for i in range(3): rd(i, L_XA)
    for i, (U, ks) in enumerate(seq):
        if i + 3 < len(seq): rd(i+3, L_XA)
        A(f"s_waitcnt lgkmcnt({min(3, len(seq)-1-i)})")
        A(f"v_mfma_f32_16x16x32_bf16 {v(GA+4*U,4)}, {v(vONE,4)}, {v(XF+4*(i%4),4)}, {'0' if ks == 0 else v(GA+4*U,4)}")
        A(f"v_mfma_f32_16x16x32_bf16 {v(UA+4*U,4)}, {v(XF+4*(i%4),4)}, {v(XF+4*(i%4),4)}, {'0' if ks == 0 else v(UA+4*U,4)}")
    A("s_nop 7")
    A(f"v_and_b32 {v(vT)}, 3, v0"); A(f"v_bfe_u32 {v(vT+1)}, v0, 2, 2"); A(f"v_lshrrev_b32 {v(vT+2)}, 4, v0")
    for U in range(2):
        g = UA + 4*U
        for r in (1, 2, 3):
            A(f"v_cmp_eq_u32 vcc, {r}, {v(vT)}"); A("s_nop 1")
            A(f"v_cndmask_b32 {v(g)}, {v(g)}, {v(g+r)}, vcc")
        A(f"v_cmp_eq_u32 vcc, {v(vT+1)}, {v(vT+2)}"); A("s_nop 1")
        A(f"v_cndmask_b32 {v(g)}, 0, {v(g)}, vcc")
        xor_swap_reduce(A, g, g+1, 'v_add_f32')
        m = GA + 4*U
        A(f"v_mul_f32 {v(m)}, 0x3b000000, {v(m)}")
        A(f"v_mul_f32 {v(g)}, 0x3b000000, {v(g)}")
        A(f"v_fma_f32 {v(g)}, -{v(m)}, {v(m)}, {v(g)}")
        A(f"v_max_f32 {v(g)}, 0, {v(g)}")
        A(f"v_add_f32 {v(g)}, 0x3727c5ac, {v(g)}")
        A(f"v_rsq_f32 {v(m+1)}, {v(g)}")
    A(f"v_and_b32 {v(vT)}, 15, v0"); A(f"v_lshlrev_b32 {v(vT)}, 3, {v(vT)}"); A(f"v_add_u32 {v(vT)}, {L_ST}, {v(vT)}")
    A("s_mov_b64 exec, 0xffff")
    for U in range(2): A(f"ds_write_b64 {v(vT)}, {v(GA+4*U,2)} offset:{U*128}")
    A("s_mov_b64 exec, -1")
    A("s_waitcnt lgkmcnt(0)")
    A.label(f"L_{lbl}_s7j")
    A("s_barrier")
    A(f"s_cmp_eq_u32 {s(sW)}, 3"); A(f"s_cbranch_scc1 L_{lbl}_hfdone")
    A(f"v_and_b32 {v(vT)}, 15, v0"); A(f"v_lshlrev_b32 {v(vT)}, 3, {v(vT)}"); A(f"v_add_u32 {v(vT)}, {L_ST}, {v(vT)}")
    ST = B
    for U in range(2): A(f"ds_read_b64 {v(ST+2*U,2)}, {v(vT)} offset:{U*128}")
    A("s_waitcnt lgkmcnt(0)")
    HP = B+8
    for U in range(2):
        for r in range(4):
            g, u = GA+4*U+r, UA+4*U+r
            A(f"v_fma_f32 {v(g)}, -{v(ST+2*U)}, {v(vCSG+r)}, {v(g)}")
            A(f"v_fma_f32 {v(u)}, -{v(ST+2*U)}, {v(vCSU+r)}, {v(u)}")
            A(f"v_mul_f32 {v(g)}, {v(g)}, {v(ST+2*U+1)}")
            A(f"v_mul_f32 {v(u)}, {v(u)}, {v(ST+2*U+1)}")
            A(f"v_mul_f32 {v(g)}, {v(g)}, {v(u)}")
        A(f"v_cvt_pk_bf16_f32 {v(HP+2*U)}, {v(GA+4*U)}, {v(GA+4*U+1)}")
        A(f"v_cvt_pk_bf16_f32 {v(HP+2*U+1)}, {v(GA+4*U+2)}, {v(GA+4*U+3)}")
    A(f"s_mul_i32 {s(sT0)}, {s(sH)}, 3"); A(f"s_add_u32 {s(sT0)}, {s(sT0)}, {s(sW)}")
    A(f"s_cmp_lt_u32 {s(sT0)}, 86"); A(f"s_cbranch_scc1 L_{lbl}_hfok")
    zero_regs(A, HP, 4)
    A.label(f"L_{lbl}_hfok")
    A(f"s_cmp_eq_u32 {s(sW)}, 2"); A(f"s_cbranch_scc1 L_{lbl}_hf2")
    A(f"s_lshl_b32 {s(sT0)}, {s(sW)}, 3"); A(f"s_add_u32 {s(sT0)}, {s(sT0)}, {L_HF}")
    A(f"v_add_u32 {v(vT)}, {s(sT0)}, {v(vL16)}")
    for U in range(2): A(f"ds_write_b64 {v(vT)}, {v(HP+2*U,2)} offset:{U*1024}")
    A(f"s_branch L_{lbl}_hfw")
    A.label(f"L_{lbl}_hf2")
    A(f"v_lshlrev_b32 {v(vT)}, 3, v0"); A(f"v_add_u32 {v(vT)}, {L_HF + 2048}, {v(vT)}")
    for U in range(2): A(f"ds_write_b64 {v(vT)}, {v(HP+2*U,2)} offset:{U*512}")
    A.label(f"L_{lbl}_hfw")
    A("s_waitcnt lgkmcnt(0)")
    A.label(f"L_{lbl}_hfdone")
    A("s_barrier")
    XS(A, 'gu')
    HF32, HF16, WF = B, B+8, B+12
    A(f"v_add_u32 {v(vT)}, {L_HF}, {v(vL16)}")
    for U in range(2): A(f"ds_read_b128 {v(HF32+4*U,4)}, {v(vT)} offset:{U*1024}")
    A(f"v_lshlrev_b32 {v(vT+1)}, 3, v0"); A(f"v_add_u32 {v(vT+1)}, {L_HF + 2048}, {v(vT+1)}")
    for U in range(2): A(f"ds_read_b64 {v(HF16+2*U,2)}, {v(vT+1)} offset:{U*512}")
    A(f"s_mul_i32 {s(sT0)}, {s(sW)}, 12288"); A(f"s_add_u32 {s(sT0)}, {s(sT0)}, {L_WD + 8192}")
    A(f"v_lshlrev_b32 {v(vT+2)}, 3, v0"); A(f"v_add_u32 {v(vT+2)}, {s(sT0)}, {v(vT+2)}")
    def pre_T(T):
        w0 = WF + 8*(T & 1)
        A(f"ds_read_b128 {v(w0,4)}, {v(vWDA)} offset:{T*1024}")
        A(f"ds_read_b64 {v(w0+4,2)}, {v(vT+2)} offset:{T*512}")
        A("s_waitcnt lgkmcnt(0)")
        A("s_nop 0")
    def afrag(T, k):
        w0 = WF + 8*(T & 1)
        return ("v_mfma_f32_16x16x32_bf16", v(w0,4)) if k == 0 else ("v_mfma_f32_16x16x16_bf16", v(w0+4,2))
    partial_stage(A, XT_PART1, 2, afrag, lambda U, k: v(HF32+4*U,4) if k == 0 else v(HF16+2*U,2), pre_T, st)
    XS(A, 'down')
    RA = reduce_stage(A, XT_PART1, f"{lbl}_r1", st)
    bf16_round(A, RA, vT)
    for r in range(4): A(f"v_add_f32 {v(RA+r)}, {v(RA+r)}, {v(vHR+r)}")
    A(f"v_cvt_pk_bf16_f32 {v(vT)}, {v(RA)}, {v(RA+1)}")
    A(f"v_cvt_pk_bf16_f32 {v(vT+1)}, {v(RA+2)}, {v(RA+3)}")
    A(f"s_lshl_b32 {s(sT0)}, {s(sSEG)}, 15")
    add64s(A, sA1, sOUT, sT0)
    A(f"s_mov_b64 exec, {s(sMLO32,2)}")
    A(f"global_store_dwordx2 {v(vXR)}, {v(vT,2)}, {s(sA1,2)}")
    A("s_mov_b64 exec, -1")
    XS(A, 'red1')
    A(f"s_add_u32 {s(sIT)}, {s(sIT)}, 1")
    A(f"s_add_u32 {s(sSEG)}, {s(sSEG)}, {nteam}")
    A(f"s_cmp_lt_u32 {s(sSEG)}, 64")
    A(f"s_cbranch_scc1 L_{lbl}_loop")
    A("s_waitcnt vmcnt(0)")
    return XS.names

def x_init_buffers(A, st):
    A(f"v_mov_b32 v108, -1"); A("v_mov_b32 v109, -1"); A("v_mov_b32 v110, -1"); A("v_mov_b32 v111, -1")
    A(f"s_lshl_b32 {s(sT0)}, {s(sH)}, 15"); A(f"s_lshl_b32 {s(sT1)}, {s(sW)}, 13"); A(f"s_add_u32 {s(sT0)}, {s(sT0)}, {s(sT1)}")
    A(f"v_lshlrev_b32 v106, 4, v0"); A(f"v_add_u32 v106, {s(sT0)}, v106")
    for part in (XT_PART0, XT_PART1):
        add64(A, sA0, sTB, part)
        for i in range(8):
            if i % 4 == 0 and i > 0: add64(A, sA0, sA0, 4096)
            A(f"global_store_dwordx4 v106, v[108:111], {s(sA0,2)} offset:{(i%4)*1024} {st}")
```

```python
import sys
from common import *
import chain3 as C3, kv as KV, xrole as XR
from teamlib import preamble, ticket
NAME = 'sequential_preLN__memory_aug_recurrent_mem_tr__glu_gated_bilinear__prompt'
KNAME = NAME + '_kernel'
sXCC, sRANK, sMODE, sTEAMG, sCB = 80, 81, 82, 83, 84
sW, sH, sWS, sDBG = 19, 18, 14, 16
D_LN, D_CARR, D_CLOAD, D_XARR, D_FB, D_PROG = 32, 36, 40, 68, 64, 96
N_X_TEAMS, N_KV_TEAMS = 5, 2
XNAMES = []

def wait_dbg(A, off_imm, target, lbl, fail, off_sreg=None, vt=1, sleep=16):
    A(f"s_cmp_eq_u32 {s(sW)}, 0"); A(f"s_cbranch_scc0 L_{lbl}_ok")
    A(f"s_add_u32 s56, {s(sCB)}, {off_imm}")
    if off_sreg is not None: A(f"s_add_u32 s56, s56, {s(off_sreg)}")
    A(f"v_mov_b32 {v(vt)}, s56")
    A("s_mov_b32 s56, 0")
    A.label(f"L_{lbl}")
    A(f"global_load_dword {v(vt+1)}, {v(vt)}, {s(sDBG,2)} sc1")
    A("s_add_u32 s56, s56, 1"); A("s_cmp_gt_u32 s56, 400000"); A(f"s_cbranch_scc1 {fail}")
    A("s_waitcnt vmcnt(0)")
    A(f"v_readfirstlane_b32 s57, {v(vt+1)}"); A("s_nop 3")
    A(f"s_cmp_ge_u32 s57, {target}"); A(f"s_cbranch_scc1 L_{lbl}_ok")
    if sleep: A(f"s_sleep {sleep}")
    A(f"s_branch L_{lbl}")
    A.label(f"L_{lbl}_ok")
    A("s_barrier")
def arrive_dbg(A, off_imm, lbl, off_sreg=None, vt=1):
    A("s_waitcnt vmcnt(0)"); A("s_barrier")
    A(f"s_cmp_eq_u32 {s(sW)}, 0"); A(f"s_cbranch_scc0 L_{lbl}")
    A(f"s_add_u32 s56, {s(sCB)}, {off_imm}")
    if off_sreg is not None: A(f"s_add_u32 s56, s56, {s(off_sreg)}")
    A(f"v_mov_b32 {v(vt)}, s56"); A(f"v_mov_b32 {v(vt+1)}, 1")
    A("s_mov_b64 exec, 1")
    A(f"global_atomic_add {v(vt)}, {v(vt+1)}, {s(sDBG,2)}")
    A("s_mov_b64 exec, -1")
    A.label(f"L_{lbl}")
def verify(A, lbl, fail, vt=1):
    A(f"s_cmp_eq_u32 {s(sMODE)}, 0"); A(f"s_cbranch_scc0 L_{lbl}_ok")
    A(f"s_cmp_eq_u32 {s(sW)}, 0"); A(f"s_cbranch_scc0 L_{lbl}_b")
    A(f"v_mbcnt_lo_u32_b32 {v(vt)}, -1, 0"); A(f"v_mbcnt_hi_u32_b32 {v(vt)}, -1, {v(vt)}")
    A(f"v_and_b32 {v(vt)}, 7, {v(vt)}"); A(f"v_lshlrev_b32 {v(vt)}, 2, {v(vt)}")
    A("s_mov_b32 s56, 0")
    A.label(f"L_{lbl}_v")
    A(f"global_load_dword {v(vt+1)}, {v(vt)}, {s(sDBG,2)} sc1")
    A("s_add_u32 s56, s56, 1"); A("s_cmp_gt_u32 s56, 400000"); A(f"s_cbranch_scc1 {fail}")
    A("s_waitcnt vmcnt(0)")
    A("s_mov_b32 s57, 1")
    A(f"v_cmp_lt_u32 vcc, 32, {v(vt+1)}"); A(f"s_cbranch_vccnz L_{lbl}_w")
    A("s_mov_b32 s57, 0")
    A(f"v_cmp_ne_u32 vcc, 32, {v(vt+1)}"); A(f"s_cbranch_vccz L_{lbl}_w")
    A("s_sleep 4")
    A(f"s_branch L_{lbl}_v")
    A.label(f"L_{lbl}_w")
    A(f"v_mov_b32 {v(vt)}, 163832"); A(f"v_mov_b32 {v(vt+1)}, s57")
    A(f"ds_write_b32 {v(vt)}, {v(vt+1)}"); A("s_waitcnt lgkmcnt(0)")
    A.label(f"L_{lbl}_b")
    A("s_barrier")
    A(f"v_mov_b32 {v(vt)}, 163832"); A(f"ds_read_b32 {v(vt+1)}, {v(vt)}"); A("s_waitcnt lgkmcnt(0)")
    A(f"v_readfirstlane_b32 s57, {v(vt+1)}"); A("s_nop 3")
    A("s_barrier")
    A("s_cmp_eq_u32 s57, 0"); A("s_cbranch_scc0 L_fallback")
    A.label(f"L_{lbl}_ok")

def build(fname, dbgtime=False, stamps=None, force_fallback=False, timing=False, x_delay=True, slR=0, slG=0, nstage_pre=8, dR=(4,8), dG=(8,6), dbl=True, order='QKVO', kvdelay=None, ldflag='', nkv=1, xstamps=False, ldstamps=False):
    global N_X_TEAMS, N_KV_TEAMS, XNAMES, XST
    N_KV_TEAMS = nkv; N_X_TEAMS = 7 - nkv; XST = xstamps
    global LDST
    LDST = ldstamps
    A = Asm()
    timing = timing or dbgtime
    global DBGTIME
    DBGTIME = dbgtime
    hdr = open('cdna_kernels/' + NAME + '.s.ref').read().split('\n')
    for ln in hdr:
        if ln.startswith('; @launch'): A.raw("; @launch kernel=" + KNAME + " grid=(256,1,1) block=(256,1,1) lds=163840")
        elif ln.startswith(';'): A.raw(ln)
        else: break
    A.raw(f'.amdgcn_target "amdgcn-amd-amdhsa--gfx950"\n.text\n.globl {KNAME}\n.p2align 8\n.type {KNAME},@function\n{KNAME}:')
    preamble(A, sW)
    A(f"s_load_dwordx2 {s(sDBG,2)}, s[0:1], 96")
    A(f"s_load_dwordx2 {s(sWS,2)}, s[0:1], 104")
    A("s_load_dwordx8 s[4:11], s[0:1], 16")
    A("s_load_dwordx2 s[12:13], s[0:1], 8")
    A(f"s_getreg_b32 {s(sXCC)}, hwreg(HW_REG_XCC_ID, 0, 4)")
    if timing: A("s_memrealtime s[86:87]")
    A("s_waitcnt lgkmcnt(0)")
    if ldstamps: A("s_memrealtime s[60:61]"); A("s_waitcnt lgkmcnt(0)"); A("s_mov_b32 s72, s60")
    if force_fallback:
        A(f"s_lshr_b32 s57, s2, 5"); A(f"s_min_u32 {s(sXCC)}, s57, 6")
    A(f"s_and_b32 {s(sXCC)}, {s(sXCC)}, 7")
    ticket(A, sW, sDBG, sXCC, sRANK, 163832)
    if ldstamps: A("s_memrealtime s[60:61]"); A("s_waitcnt lgkmcnt(0)"); A("s_mov_b32 s73, s60")
    A(f"s_mov_b32 {s(sMODE)}, 0"); A(f"s_mov_b32 {s(sCB)}, 0")
    A(f"s_mov_b32 {s(sTEAMG)}, {s(sXCC)}"); A(f"s_mov_b32 {s(sH)}, {s(sRANK)}")
    A(f"s_cmp_lt_u32 {s(sRANK)}, 32"); A("s_cbranch_scc0 L_fallback")
    A.label("L_dispatch")
    A(f"s_cmp_eq_u32 {s(sTEAMG)}, 0"); A("s_cbranch_scc1 L_role_chain")
    A(f"s_cmp_le_u32 {s(sTEAMG)}, {N_KV_TEAMS}"); A("s_cbranch_scc1 L_role_kv")
    A("s_branch L_role_x")
    A.label("L_exit0")
    A("s_endpgm")
    A.label("L_role_chain")
    C3.first_issue(A, order=order, ldflag=ldflag)
    if ldstamps: A("s_memrealtime s[60:61]"); A("s_waitcnt lgkmcnt(0)"); A("s_mov_b32 s74, s60")
    C3.prologue_addresses(A)
    C3.loader_addresses(A)
    C3.chain_scalars(A)
    A(f"s_cmp_eq_u32 {s(sMODE)}, 0"); A(f"s_cbranch_scc0 L_c_initS")
    C3.chain_init_buffers(A, '')
    A(f"s_branch L_c_initD")
    A.label(f"L_c_initS")
    C3.chain_init_buffers(A, 'sc1')
    A.label(f"L_c_initD")
    def m0_hook(A, w, issued):
        C3.mem0_loads(A); issued.append(('m0', 4))
    def arr_hook(A, w, issued):
        if w == 0:
            A(f"s_add_u32 s56, {s(sCB)}, {D_CARR}"); A("v_mov_b32 v124, s56"); A("v_mov_b32 v125, 1")
            A("s_mov_b64 exec, 1")
            A(f"global_atomic_add v124, v125, {s(sDBG,2)}"); A("s_mov_b64 exec, -1")
            issued.append(('arr', 1))
    def mk_ld(k):
        def f(A, w, issued):
            A("s_memrealtime s[60:61]"); A("s_waitcnt lgkmcnt(0)"); A(f"s_mov_b32 s{64+k}, s60")
        return f
    ld_hooks = {c: mk_ld(k) for k, c in enumerate((0, 4, 9, 16, 24, 28, 31))}
    def progress_fn(A, w, issued):
        if w == 0:
            A(f"s_add_u32 s56, {s(sCB)}, {D_PROG}"); A("v_mov_b32 v116, s56"); A("v_mov_b32 v117, 1")
            A("s_mov_b64 exec, 1")
            A(f"global_atomic_add v116, v117, {s(sDBG,2)}"); A("s_mov_b64 exec, -1")
            issued.append(('x', 1))
    for w in range(4):
        A(f"s_cmp_eq_u32 {s(sW)}, {w}"); A(f"s_cbranch_scc1 L_c_load{w}")
    A("s_endpgm")
    for w in range(4):
        A.label(f"L_c_load{w}")
        C3.loader(A, w, order=order, progress=(kvdelay, progress_fn) if kvdelay is not None else None, ldflag=ldflag, hooks={**{8: arr_hook, 10: m0_hook}, **(ld_hooks if ldstamps else {})})
        if w < 3: A("s_branch L_c_loaded")
    A.label("L_c_loaded")
    if timing: A("s_memrealtime s[88:89]")
    arrive_dbg(A, D_CLOAD, 'c_larr', vt=106)
    def counters(A, what):
        if what == 'load':
            A("v_mbcnt_lo_u32_b32 v102, -1, 0"); A("v_mbcnt_hi_u32_b32 v102, -1, v102")
            A("v_lshlrev_b32 v106, 2, v102")
            A(f"s_add_u32 s56, {s(sCB)}, {D_CARR}"); A(f"s_add_u32 s57, {s(sCB)}, {D_LN}")
            A("v_mov_b32 v107, s56"); A("v_cmp_eq_u32 vcc, 8, v102"); A("s_nop 1"); A("v_cndmask_b32 v106, v106, v107, vcc")
            A("v_mov_b32 v107, s57"); A("v_cmp_le_u32 vcc, 9, v102"); A("s_nop 1"); A("v_cndmask_b32 v106, v106, v107, vcc")
            A(f"global_load_dword v107, v106, {s(sDBG,2)} sc1")
        else:
            A(f"v_mov_b32 v101, 32"); A(f"v_mov_b32 v104, {32*N_X_TEAMS}")
            A("v_cmp_le_u32 vcc, 9, v102"); A("s_nop 1"); A("v_cndmask_b32 v101, v101, v104, vcc")
            A(f"s_cmp_eq_u32 {s(sMODE)}, 0"); A("s_cbranch_scc1 L_c_cfast")
            A("s_mov_b32 exec_lo, 0xffffff00"); A("s_mov_b32 exec_hi, -1")
            A("v_cmp_gt_u32 vcc, v101, v107"); A("s_mov_b64 exec, -1"); A("s_cbranch_vccnz L_c_chk"); A("s_branch L_c_cok")
            A.label("L_c_cfast")
            A("s_mov_b64 exec, 0xff"); A("v_cmp_lt_u32 vcc, 32, v107"); A("s_mov_b64 exec, -1"); A("s_cbranch_vccnz L_fallback")
            A("v_cmp_gt_u32 vcc, v101, v107"); A("s_cbranch_vccnz L_c_chk")
            A.label("L_c_cok")
    C3.chain_state0(A, 'L_fail_c', counters)
    if stamps:
        for k in range(16): A(f"s_mov_b32 {s(C3.sTS+k)}, 0")
    if timing: A("s_memrealtime s[90:91]"); A("s_memtime s[94:95]"); A("s_waitcnt lgkmcnt(0)")
    for pfx, mode in (('F', 0), ('S', 1)):
        for w in range(4):
            A(f"s_cmp_eq_u32 {s(sMODE)}, {mode}"); A(f"s_cselect_b32 s56, {s(sW)}, 99"); A(f"s_cmp_eq_u32 s56, {w}")
            A(f"s_cbranch_scc1 L_c_start_{pfx}{w}")
    A("s_endpgm")
    A.label("L_fail_c")
    A("v_mov_b32 v1, 240"); A("v_mov_b32 v2, 0xdead"); A(f"global_store_dword v1, v2, {s(sDBG,2)}")
    A("s_endpgm")
    for pfx, st in (('F', ''), ('S', 'sc1')):
        for w in range(4):
            A.label(f"L_c_start_{pfx}{w}")
            if stamps:
                A(f"s_memtime {s(C3.sTS,2)}"); A("s_waitcnt lgkmcnt(0)"); A(f"s_mov_b32 {s(C3.sTS+2)}, {s(C3.sTS)}")
            C3.chain_start(A, w, pfx)
            C3.step_loop(A, w, pfx, st_team=st, stamps=stamps if pfx == 'F' else None, slR=slR, slG=slG, nstage_pre=nstage_pre, dR=dR, dG=dG, dbl=dbl)
        A.label(f"L_{pfx}_fail")
        A("v_mov_b32 v1, 240"); A("v_mov_b32 v2, 0xdead"); A(f"global_store_dword v1, v2, {s(sDBG,2)}")
        A.label(f"L_{pfx}_done")
        if timing and pfx == 'F':
            A("s_memrealtime s[92:93]"); A("s_memtime s[62:63]"); A("s_waitcnt lgkmcnt(0)")
            A("s_sub_u32 s62, s62, s94")
            timing_store(A, 0, stamps)
        A("s_endpgm")
    A.label("L_fallback")
    A("s_mov_b64 exec, -1")
    A("s_waitcnt vmcnt(0) lgkmcnt(0)"); A("buffer_wbl2 sc1"); A("s_waitcnt vmcnt(0)")
    A(f"s_mov_b32 {s(sCB)}, 0")
    arrive_dbg(A, D_FB, 'fb_arr')
    wait_dbg(A, D_FB, 256, 'fb_wait', 'L_fail0')
    A("buffer_inv sc1"); A("s_waitcnt vmcnt(0)")
    A("v_mbcnt_lo_u32_b32 v1, -1, 0"); A("v_mbcnt_hi_u32_b32 v1, -1, v1")
    A("v_and_b32 v1, 7, v1"); A("v_lshlrev_b32 v1, 2, v1")
    A(f"global_load_dword v2, v1, {s(sDBG,2)} sc1"); A("s_waitcnt vmcnt(0)")
    A(f"s_mov_b32 s58, {s(sRANK)}")
    for x in range(7):
        A(f"v_readlane_b32 s57, v2, {x}"); A("s_nop 3")
        A(f"s_cmp_gt_u32 {s(sXCC)}, {x}"); A("s_cselect_b32 s57, s57, 0"); A("s_add_u32 s58, s58, s57")
    A(f"s_lshr_b32 {s(sTEAMG)}, s58, 5"); A(f"s_and_b32 {s(sH)}, s58, 31")
    A(f"s_mov_b32 {s(sMODE)}, 1"); A(f"s_mov_b32 {s(sCB)}, 128")
    A("v_mbcnt_lo_u32_b32 v0, -1, 0"); A("v_mbcnt_hi_u32_b32 v0, -1, v0")
    A("s_load_dwordx8 s[4:11], s[0:1], 16"); A("s_load_dwordx2 s[12:13], s[0:1], 8"); A("s_waitcnt lgkmcnt(0)")
    A("s_barrier")
    A("s_branch L_dispatch")
    A.label("L_fail0")
    A("v_mov_b32 v1, 252"); A("v_mov_b32 v2, 0xdead"); A(f"global_store_dword v1, v2, {s(sDBG,2)}")
    A("s_endpgm")
    A.label("L_exit")
    A("s_endpgm")
    A.label("L_role_kv")
    verify(A, 'kv', 'L_fail_kv')
    if kvdelay is not None: wait_dbg(A, D_PROG, 32, 'kv_prog', 'L_fail_kv')
    KV.kv_load_weights(A)
    wait_dbg(A, D_LN, 32*N_X_TEAMS, 'kv_ln', 'L_fail_kv')
    A(f"s_sub_u32 s42, {s(sTEAMG)}, 1")
    KV.kv_loop(A, 42, N_KV_TEAMS, 64)
    A("s_endpgm")
    A.label("L_fail_kv")
    A("v_mov_b32 v1, 248"); A("v_mov_b32 v2, 0xdead"); A(f"global_store_dword v1, v2, {s(sDBG,2)}")
    A("s_endpgm")
    A.label("L_role_x")
    for (r, off) in ((XR.sX, 0), (XR.sWQ, 16), (XR.sWO, 40), (XR.sWG, 64), (XR.sWU, 72), (XR.sWD, 80), (XR.sOUT, 88)):
        A(f"s_load_dwordx2 {s(r,2)}, s[0:1], {off}")
    A("s_waitcnt lgkmcnt(0)")
    verify(A, 'x', 'L_fail')
    A(f"s_sub_u32 {s(XR.sTEAM)}, {s(sTEAMG)}, {1 + N_KV_TEAMS}")
    A(f"s_lshl_b32 s40, {s(XR.sTEAM)}, 5"); A(f"s_add_u32 s40, s40, {s(sH)}")
    A(f"s_cmp_eq_u32 {s(sW)}, 1"); A("s_cbranch_scc0 L_x_nozero")
    A("s_cmp_lt_u32 s40, 32"); A("s_cbranch_scc0 L_x_nozero")
    A("s_lshl_b32 s41, s40, 10"); A(f"s_add_u32 s41, s41, {hex(WS_FLAG)}")
    A("v_lshlrev_b32 v1, 4, v0"); A("v_add_u32 v1, s41, v1")
    zero_regs(A, 4, 4)
    A(f"global_store_dwordx4 v1, v[4:7], {s(sWS,2)} sc1")
    A.label("L_x_nozero")
    A(f"s_cmp_eq_u32 {s(sW)}, 0"); A("s_cbranch_scc0 L_x_noln")
    A("s_cmp_lt_u32 s40, 128"); A("s_cbranch_scc0 L_x_noln")
    KV.ln_tile(A, 40, 'ln')
    A.label("L_x_noln")
    arrive_dbg(A, D_LN, 'x_lnarr')
    A(f"s_mov_b32 {s(XR.sSEG)}, {s(XR.sTEAM)}")
    A(f"s_mul_i32 {s(XR.sT0)}, {s(XR.sTEAM)}, {XT_STRIDE}"); A(f"s_add_u32 {s(XR.sT0)}, {s(XR.sT0)}, {hex(WS_XT)}")
    add64s(A, XR.sTB, sWS, XR.sT0)
    A(f"s_cmp_eq_u32 {s(sMODE)}, 0"); A("s_cbranch_scc0 L_x_initS")
    XR.x_init_buffers(A, '')
    A("s_branch L_x_initD")
    A.label("L_x_initS")
    XR.x_init_buffers(A, 'sc1')
    A.label("L_x_initD")
    A(f"s_lshl_b32 s41, {s(XR.sTEAM)}, 2")
    arrive_dbg(A, D_XARR, 'x_tarr', off_sreg=41)
    XR.x_addresses(A)
    if x_delay: wait_dbg(A, D_CLOAD, 32, 'x_cload', 'L_fail', vt=10)
    XR.x_load_weights(A)
    wait_dbg(A, D_LN, 32*N_X_TEAMS, 'x_lnw', 'L_fail', vt=10)
    A(f"s_lshl_b32 s41, {s(XR.sTEAM)}, 2")
    wait_dbg(A, D_XARR, 32, 'x_tw', 'L_fail', off_sreg=41, vt=10)
    A(f"s_cmp_eq_u32 {s(sMODE)}, 0"); A("s_cbranch_scc0 L_x_slow")
    XNAMES = XR.x_loop(A, N_X_TEAMS, st='', lbl='XF', stamps=xstamps)
    A("s_branch L_x_end")
    A.label("L_x_slow")
    XR.x_loop(A, N_X_TEAMS, st='sc1', lbl='XS')
    A.label("L_x_end")
    if timing:
        A("s_memrealtime s[88:89]"); A("s_waitcnt lgkmcnt(0)")
        timing_store(A, 2)
    A("s_endpgm")
    A.label("L_fail")
    A("v_mov_b32 v1, 244"); A("v_mov_b32 v2, 0xdead"); A(f"global_store_dword v1, v2, {s(sDBG,2)}")
    A("s_endpgm")
    A.raw(f""".section .rodata,"a"
.p2align 6
.amdhsa_kernel {KNAME}
  .amdhsa_next_free_vgpr 512
  .amdhsa_next_free_sgpr 102
  .amdhsa_accum_offset 256
  .amdhsa_group_segment_fixed_size 0
  .amdhsa_kernarg_size 112
  .amdhsa_user_sgpr_count 2
  .amdhsa_user_sgpr_kernarg_segment_ptr 1
  .amdhsa_system_sgpr_workgroup_id_x 1
.end_amdhsa_kernel""")
    txt = A.text()
    open(fname, 'w').write(txt)
    return txt

WS_TIME = 0x8000000
def timing_store(A, kind, stamps=None):
    if DBGTIME:
        lab = f"L_dt{kind}"
        A(f"s_or_b32 s56, {s(sH)}, {s(sW)}"); A("s_cmp_eq_u32 s56, 0"); A(f"s_cbranch_scc0 {lab}")
        if kind == 0:
            A("s_sub_u32 s88, s88, s86"); A("s_sub_u32 s90, s90, s86"); A("s_sub_u32 s92, s92, s86")
            A("v_mov_b32 v1, 44"); A("v_mov_b32 v4, s88"); A("v_mov_b32 v5, s90"); A("v_mov_b32 v6, s92")
            A(f"global_store_dwordx3 v1, v[4:6], {s(sDBG,2)}")
        else:
            A(f"s_cmp_eq_u32 {s(sTEAMG)}, 6"); A(f"s_cbranch_scc0 {lab}")
            A("s_sub_u32 s88, s88, s86"); A("v_mov_b32 v1, 56"); A("v_mov_b32 v4, s88")
            A(f"global_store_dword v1, v4, {s(sDBG,2)}")
        A("s_waitcnt vmcnt(0)")
        A.label(lab)
        return
    A(f"s_lshl_b32 s56, {s(sTEAMG)}, 5"); A(f"s_add_u32 s56, s56, {s(sH)}"); A("s_lshl_b32 s56, s56, 2"); A(f"s_add_u32 s56, s56, {s(sW)}")
    A("s_lshl_b32 s56, s56, 6"); A(f"s_add_u32 s56, s56, {hex(WS_TIME)}")
    A("v_mov_b32 v1, s56")
    A("v_mov_b32 v4, s86"); A("v_mov_b32 v5, s88"); A("v_mov_b32 v6, s90"); A("v_mov_b32 v7, s92")
    A(f"global_store_dwordx4 v1, v[4:7], {s(sWS,2)}")
    if kind == 2 and XST:
        for q in range(3):
            for i in range(4): A(f"v_mov_b32 {v(8+i)}, s{64+4*q+i}")
            A(f"global_store_dwordx4 v1, v[8:11], {s(sWS,2)} offset:{16+16*q}")
            A("s_nop 1")
    if kind == 0 and LDST:
        for q in range(3):
            for i in range(4): A(f"v_mov_b32 {v(8+i)}, s{64+4*q+i}")
            A(f"global_store_dwordx4 v1, v[8:11], {s(sWS,2)} offset:{16+16*q}")
            A("s_nop 1")
    elif kind == 0 and not stamps:
        A("v_mov_b32 v8, s62"); A(f"global_store_dword v1, v8, {s(sWS,2)} offset:60")
    if stamps:
        for q in range(3):
            for i in range(4): A(f"v_mov_b32 {v(8+i)}, {s(C3.sTS+4+4*q+i)}")
            A(f"global_store_dwordx4 v1, v[8:11], {s(sWS,2)} offset:{16+16*q}")
            A("s_nop 1")
    A("s_waitcnt vmcnt(0)")

if __name__ == '__main__':
    import json
    out = 'cdna_kernels/' + NAME + '.s' if len(sys.argv) < 2 else 'm_main.s'
    txt = build(out)
    check_hazards(txt, mfma_states=3)
    print(len(txt), 'bytes', txt.count('\n'), 'lines')
    build('m_time.s', timing=True)
    sets = {}
    def mk(nm, st, **kw):
        sets[nm] = st + ['-']*(12-len(st))
        build(f'gen/{nm}.s', timing=True, stamps=st, **kw)
    if len(sys.argv) > 1 and sys.argv[1] == 'scan':
        import ast
        for spec in sys.argv[2:]:
            nm, kw = spec.split('=', 1)
            build(f'gen/{nm}.s', timing=True, **ast.literal_eval(kw))
    if len(sys.argv) > 1 and sys.argv[1] == 'dbgtime':
        build('dbgtime.s', dbgtime=True, slR=2, slG=2, nstage_pre=8)
    if len(sys.argv) > 1 and sys.argv[1] == 'abs':
        mk('m_tabs', ['ABS','gather','B1','B3','Wo','pollR','red','adv'], slR=2, slG=2, nstage_pre=8)
    if len(sys.argv) > 1 and sys.argv[1] == 'stamps':
        mk('m_tA', ['gather','B1','q','k','B2b','S','exp','PV','B3','Wo'])
        mk('m_tB', ['B3','Wo','pollR','red','adv','gather'])
    json.dump(sets, open('msets.json', 'w'))
```
